```python
import torch

def _softmax(x, axis=-1):
    return torch.softmax(x, dim=axis)
def _gelu(x):
    return torch.nn.functional.gelu(x, approximate="tanh")
def _silu(x):
    return torch.nn.functional.silu(x)
def _sigmoid(x):
    return torch.sigmoid(x)
def _layernorm(x, axis=-1, eps=1e-5):
    m = x.mean(dim=axis, keepdim=True)
    v = x.var(dim=axis, keepdim=True, unbiased=False)
    return (x - m) / torch.sqrt(v + eps)
def _scatter_add(tgt, idx, src, axis=0):
    return tgt.clone().index_add_(axis, idx, src)
def _segment_sum(src, seg, n):
    out = torch.zeros((n,) + src.shape[1:], dtype=src.dtype)
    return out.index_add_(0, seg, src)
def _pad(x, pw):
    flat = tuple(v for pair in reversed(pw) for v in pair)
    return torch.nn.functional.pad(x, flat)

kernel_name = 'parallel_sum__grouped_kv_mqa__glu_gated_reglu__prompt'

def setup_inputs():

    _w = (lambda a: (lambda t: t.to(torch.bfloat16) if t.is_floating_point() else t)(torch.as_tensor(a)))
    def _A_setup():
        B, S, D, H = 1, 2048, 512, 32
        Dh = D // H
        return {
            "x": _w((lambda *s: torch.randn(*s, dtype=torch.bfloat16) * 0.05)(B, S, D)),
            "wq": _w((lambda *s: torch.randn(*s, dtype=torch.bfloat16) * 0.05)(D, H * Dh)),
            "wk": _w((lambda *s: torch.randn(*s, dtype=torch.bfloat16) * 0.05)(D, Dh)),
            "wv": _w((lambda *s: torch.randn(*s, dtype=torch.bfloat16) * 0.05)(D, Dh)),
            "wo": _w((lambda *s: torch.randn(*s, dtype=torch.bfloat16) * 0.05)(H * Dh, D)),
        }
    _A_in = _A_setup()

    def _B_setup():
        B, S, D, F = 1, 2048, 512, 1792
        return {
            "x": _w((lambda *s: torch.randn(*s, dtype=torch.bfloat16) * 0.05)(B, S, D)),
            "W_gate": _w((lambda *s: torch.randn(*s, dtype=torch.bfloat16) * 0.4)(D, F) * (2.0 / D) ** 0.5),
            "W_up": _w((lambda *s: torch.randn(*s, dtype=torch.bfloat16) * 0.4)(D, F) * (2.0 / D) ** 0.5),
            "W_down": _w((lambda *s: torch.randn(*s, dtype=torch.bfloat16) * 0.4)(F, D) * (1.0 / F) ** 0.5),
        }
    _B_in = _B_setup()

    return {
        "A_x": _A_in["x"],
        "A_wq": _A_in["wq"],
        "A_wk": _A_in["wk"],
        "A_wv": _A_in["wv"],
        "A_wo": _A_in["wo"],
        "B_x": _B_in["x"],
        "B_W_gate": _B_in["W_gate"],
        "B_W_up": _B_in["W_up"],
        "B_W_down": _B_in["W_down"],
    }

def reference(A_x, A_wq, A_wk, A_wv, A_wo, B_x, B_W_gate, B_W_up, B_W_down):
    def _A_ref(x, wq, wk, wv, wo):
        B, S, D = x.shape
        H = 32
        Dh = D // H
        q = (lambda x, *d: x.permute(*d))((x @ wq).reshape(B, S, H, Dh), 0, 2, 1, 3)
        k = x @ wk
        v = x @ wv
        scores = torch.einsum("bhqd,bkd->bhqk", q, k) * (Dh ** -0.5)
        p = _softmax(scores, axis=-1)
        o = torch.einsum("bhqk,bkd->bhqd", p, v)
        return (lambda x, *d: x.permute(*d))(o, 0, 2, 1, 3).reshape(B, S, H * Dh) @ wo

    def _B_ref(x, W_gate, W_up, W_down):
        gate = torch.einsum("bsd,df->bsf", x, W_gate)
        up = torch.einsum("bsd,df->bsf", x, W_up)
        gate = gate * (lambda x, dt: x.to(dt))(gate > 0, gate.dtype)
        h = gate * up
        return torch.einsum("bsf,fd->bsd", h, W_down)

    x = A_x
    xn = _layernorm(x, axis=-1)
    return x + _A_ref(xn, A_wq, A_wk, A_wv, A_wo) + _B_ref(xn, B_W_gate, B_W_up, B_W_down)
```

```python
class KB:
    def __init__(self, name):
        self.name = name
        self.l = []
        self.uid = 0
    def e(self, s):
        for ln in s.strip("\n").split("\n"):
            ln = ln.strip()
            if ln:
                self.l.append("    " + ln if not ln.endswith(":") else ln)
    def c(self, s):
        self.l.append("    ; " + s)
    def lab(self, s):
        self.l.append(s + ":")
    def newlabel(self, base):
        self.uid += 1
        return f"L_{self.name}_{base}_{self.uid}"
    def text(self):
        return "\n".join(self.l)

def vr(a, n=1):
    return f"v{a}" if n == 1 else f"v[{a}:{a+n-1}]"
def sr(a, n=1):
    return f"s{a}" if n == 1 else f"s[{a}:{a+n-1}]"

def kernel_text(name, body, vgpr, sgpr=102, accum=None):
    if accum is None:
        accum = (vgpr + 3) // 4 * 4
    head = f""".text
.globl {name}
.p2align 8
.type {name},@function
{name}:
{body}
    s_endpgm
"""
    desc = f""".section .rodata,"a"
.p2align 6
.amdhsa_kernel {name}
  .amdhsa_next_free_vgpr {vgpr}
  .amdhsa_next_free_sgpr {sgpr}
  .amdhsa_accum_offset {accum}
  .amdhsa_group_segment_fixed_size 0
  .amdhsa_kernarg_size 96
  .amdhsa_user_sgpr_count 2
  .amdhsa_user_sgpr_kernarg_segment_ptr 1
  .amdhsa_system_sgpr_workgroup_id_x 1
  .amdhsa_float_denorm_mode_32 3
  .amdhsa_float_denorm_mode_16_64 3
.end_amdhsa_kernel
"""
    return head, desc

HEADER = """; Kernarg layout for this problem (96 bytes, ptrs only, base s[0:1]):
"""

def assemble_file(launches, kernels):
    out = [HEADER.rstrip("\n")]
    for (n, g, b, lds) in launches:
        out.append(f"; @launch kernel={n} grid=({g},1,1) block=({b},1,1) lds={lds}")
    out.append('.amdgcn_target "amdgcn-amd-amdhsa--gfx950"')
    for h, d in kernels:
        out.append(h)
    for h, d in kernels:
        out.append(d)
    return "\n".join(out) + "\n"
```

```python
from asmlib import *
from layout import *
import struct

def f2u(x):
    return struct.unpack("<I", struct.pack("<f", x))[0]

def wave_allreduce_max(k, x, y):
    k.e(f"""
    s_nop 1
    v_max_f32_dpp v{x}, v{x}, v{x} quad_perm:[1,0,3,2] row_mask:0xf bank_mask:0xf
    s_nop 1
    v_max_f32_dpp v{x}, v{x}, v{x} quad_perm:[2,3,0,1] row_mask:0xf bank_mask:0xf
    s_nop 1
    v_max_f32_dpp v{x}, v{x}, v{x} row_half_mirror row_mask:0xf bank_mask:0xf
    s_nop 1
    v_max_f32_dpp v{x}, v{x}, v{x} row_mirror row_mask:0xf bank_mask:0xf
    s_nop 1
    v_mov_b32 v{y}, v{x}
    s_nop 1
    v_permlane16_swap_b32 v{x}, v{y}
    s_nop 1
    v_max_f32 v{x}, v{x}, v{y}
    v_mov_b32 v{y}, v{x}
    s_nop 1
    v_permlane32_swap_b32 v{x}, v{y}
    s_nop 1
    v_max_f32 v{x}, v{x}, v{y}
    """)

class AttnRegs:
    def __init__(self, NQ, base):
        b = base
        def al(n, align=2):
            nonlocal b
            b = (b + align - 1) // align * align
            r = b; b += n
            return r
        self.Q = [al(4) for _ in range(NQ)]
        self.C = [al(16) for _ in range(NQ)]
        self.S = [al(16) for _ in range(2)]
        self.P = [al(8) for _ in range(2)]
        self.O = [al(16) for _ in range(NQ)]
        self.K = al(4)
        self.V = [al(8) for _ in range(2)]
        self.vK = al(1, 1)
        self.vV = al(1, 1)
        self.t = [al(1, 1) for _ in range(6)]
        self.end = b

def segment(k, S, P, qk, pv, reads, wait):
    E = [f"v_exp_f32 v{S+i}, v{S+i}" for i in range(16)]
    C = [f"v_cvt_pk_bf16_f32 v{P+i}, v{S+2*i}, v{S+2*i+1}" for i in range(8)]
    dS, K_, Q_, C_ = qk
    O_, V_, Ps = pv
    mqk = f"v_mfma_f32_32x32x16_bf16 v[{dS}:{dS+15}], v[{K_}:{K_+3}], v[{Q_}:{Q_+3}], v[{C_}:{C_+15}]"
    m0 = f"v_mfma_f32_32x32x16_bf16 v[{O_}:{O_+15}], v[{V_}:{V_+3}], v[{Ps}:{Ps+3}], v[{O_}:{O_+15}]"
    m1 = f"v_mfma_f32_32x32x16_bf16 v[{O_}:{O_+15}], v[{V_+4}:{V_+7}], v[{Ps+4}:{Ps+7}], v[{O_}:{O_+15}]"
    seq = []
    if wait: seq.append(wait)
    seq.append(mqk)
    seq += reads
    seq += E[0:4]
    seq.append(m0)
    seq += [E[4], E[5], C[0], E[6], E[7], C[1]]
    seq.append(m1)
    seq += [E[8], E[9], C[2], E[10], E[11], C[3], E[12], E[13], C[4], E[14], E[15], C[5], C[6], C[7]]
    for s in seq: k.e(s)

def attn_body(k, R, NQ, U, s_tmp):
    lp = k.newlabel("attnloop")
    k.e(f"ds_read_b128 v[{R.K}:{R.K+3}], v{R.vK}")
    if NQ == 1:
        k.e("s_waitcnt lgkmcnt(0)")
        k.e(f"v_mfma_f32_32x32x16_bf16 v[{R.S[0]}:{R.S[0]+15}], v[{R.K}:{R.K+3}], v[{R.Q[0]}:{R.Q[0]+3}], v[{R.C[0]}:{R.C[0]+15}]")
        k.e(f"ds_read_b128 v[{R.K}:{R.K+3}], v{R.vK} offset:1024")
        k.e("s_nop 7\ns_nop 7")
        k.e(f"s_mov_b32 s{s_tmp}, {64 // U}")
        k.e(".p2align 6")
        k.lab(lp)
        for i in range(U):
            reads = [f"ds_read_b128 v[{R.K}:{R.K+3}], v{R.vK} offset:{(i+2)*1024}",
                     f"ds_read_b128 v[{R.V[i&1]}:{R.V[i&1]+3}], v{R.vV} offset:{i*1088}",
                     f"ds_read_b128 v[{R.V[i&1]+4}:{R.V[i&1]+7}], v{R.vV} offset:{i*1088+544}"]
            segment(k, R.S[i & 1], R.P[i & 1], (R.S[(i + 1) & 1], R.K, R.Q[0], R.C[0]),
                    (R.O[0], R.V[(i + 1) & 1], R.P[(i + 1) & 1]), reads, "s_waitcnt lgkmcnt(0)")
        k.e(f"v_add_u32 v{R.vK}, {U*1024}, v{R.vK}")
        k.e(f"v_add_u32 v{R.vV}, {U*1088}, v{R.vV}")
        k.e(f"s_sub_u32 s{s_tmp}, s{s_tmp}, 1")
        k.e(f"s_cmp_lg_u32 s{s_tmp}, 0")
        k.e(f"s_cbranch_scc1 {lp}")
        k.e("s_waitcnt lgkmcnt(0)")
        O_, V_, Ps = R.O[0], R.V[1], R.P[1]
        k.e(f"v_mfma_f32_32x32x16_bf16 v[{O_}:{O_+15}], v[{V_}:{V_+3}], v[{Ps}:{Ps+3}], v[{O_}:{O_+15}]")
        k.e(f"v_mfma_f32_32x32x16_bf16 v[{O_}:{O_+15}], v[{V_+4}:{V_+7}], v[{Ps+4}:{Ps+7}], v[{O_}:{O_+15}]")
    else:
        k.e("s_waitcnt lgkmcnt(0)")
        k.e(f"v_mfma_f32_32x32x16_bf16 v[{R.S[0]}:{R.S[0]+15}], v[{R.K}:{R.K+3}], v[{R.Q[0]}:{R.Q[0]+3}], v[{R.C[0]}:{R.C[0]+15}]")
        k.e("s_nop 7\ns_nop 7")
        k.e(f"s_mov_b32 s{s_tmp}, {64 // U}")
        k.e(".p2align 6")
        k.lab(lp)
        for i in range(U):
            reads = [f"ds_read_b128 v[{R.K}:{R.K+3}], v{R.vK} offset:{(i+1)*1024}",
                     f"ds_read_b128 v[{R.V[i&1]}:{R.V[i&1]+3}], v{R.vV} offset:{i*1088}",
                     f"ds_read_b128 v[{R.V[i&1]+4}:{R.V[i&1]+7}], v{R.vV} offset:{i*1088+544}"]
            segment(k, R.S[0], R.P[0], (R.S[1], R.K, R.Q[1], R.C[1]),
                    (R.O[1], R.V[(i + 1) & 1], R.P[1]), reads, None)
            segment(k, R.S[1], R.P[1], (R.S[0], R.K, R.Q[0], R.C[0]),
                    (R.O[0], R.V[i & 1], R.P[0]), [], "s_waitcnt lgkmcnt(0)")
        k.e(f"v_add_u32 v{R.vK}, {U*1024}, v{R.vK}")
        k.e(f"v_add_u32 v{R.vV}, {U*1088}, v{R.vV}")
        k.e(f"s_sub_u32 s{s_tmp}, s{s_tmp}, 1")
        k.e(f"s_cmp_lg_u32 s{s_tmp}, 0")
        k.e(f"s_cbranch_scc1 {lp}")
        O_, V_, Ps = R.O[1], R.V[1], R.P[1]
        k.e(f"v_mfma_f32_32x32x16_bf16 v[{O_}:{O_+15}], v[{V_}:{V_+3}], v[{Ps}:{Ps+3}], v[{O_}:{O_+15}]")
        k.e(f"v_mfma_f32_32x32x16_bf16 v[{O_}:{O_+15}], v[{V_+4}:{V_+7}], v[{Ps+4}:{Ps+7}], v[{O_}:{O_+15}]")

def maxpass(k, R, qi, s_tmp):
    lp = k.newlabel("maxloop")
    m, t = R.t[0], R.t[1]
    va = R.t[2]
    k.e(f"v_mov_b32 v{m}, 0xff800000")
    k.e(f"v_mov_b32 v{va}, v{R.vK}")
    k.e(f"s_mov_b32 s{s_tmp}, 64")
    k.lab(lp)
    k.e(f"ds_read_b128 v[{R.K}:{R.K+3}], v{va}")
    k.e(f"v_add_u32 v{va}, 1024, v{va}")
    k.e("s_waitcnt lgkmcnt(0)")
    k.e(f"v_mfma_f32_32x32x16_bf16 v[{R.S[0]}:{R.S[0]+15}], v[{R.K}:{R.K+3}], v[{R.Q[qi]}:{R.Q[qi]+3}], 0")
    k.e("s_nop 15\ns_nop 3")
    for i in range(8):
        k.e(f"v_max3_f32 v{m}, v{R.S[0]+2*i}, v{R.S[0]+2*i+1}, v{m}")
    k.e(f"s_sub_u32 s{s_tmp}, s{s_tmp}, 1")
    k.e(f"s_cmp_lg_u32 s{s_tmp}, 0")
    k.e(f"s_cbranch_scc1 {lp}")
    k.e(f"v_mov_b32 v{t}, v{m}")
    k.e("s_nop 1")
    k.e(f"v_permlane32_swap_b32 v{m}, v{t}")
    k.e("s_nop 1")
    k.e(f"v_max_f32 v{m}, v{m}, v{t}")
    for i in range(16):
        k.e(f"v_sub_f32 v{R.C[qi]+i}, 0, v{m}")

def attn_kernel(NQ=2, U=4, name="attn_kernel", stamps=False):
    k = KB(name)
    NW = 8 // NQ
    R = AttnRegs(NQ, 8)
    done = k.newlabel("done")
    k.e(f"""
    s_cmp_ge_u32 s2, 256
    s_cbranch_scc1 {done}
    s_load_dwordx2 s[4:5], s[0:1], 88
    s_memtime s[30:31]
    s_memrealtime s[40:41]
    s_load_dwordx2 s[48:49], s[0:1], 80
    v_lshrrev_b32 v3, 6, v0
    v_and_b32 v1, 63, v0
    v_readfirstlane_b32 s8, v3
    v_lshlrev_b32 v2, 4, v1
    s_and_b32 s11, s2, 7
    s_lshr_b32 s12, s2, 3
    s_and_b32 s9, s11, 1
    s_lshl_b32 s9, s9, 3
    s_and_b32 s13, s12, 7
    s_add_u32 s9, s9, s13
    s_lshr_b32 s10, s11, 1
    s_lshl_b32 s10, s10, 2
    s_lshr_b32 s13, s12, 3
    s_add_u32 s10, s10, s13
    s_waitcnt lgkmcnt(0)
    s_mov_b32 s6, {WS_SIZE}
    s_mov_b32 s7, 0x20000
    """)
    lp = k.newlabel("kvdma")
    k.e(f"""
    s_lshl_b32 s12, s8, 10
    s_add_u32 s13, s12, {WS_K}
    """)
    k.lab(lp)
    k.e(f"""
    s_mov_b32 m0, s12
    s_add_u32 s12, s12, {NW*1024}
    buffer_load_dwordx4 v2, s[4:7], s13 offen lds
    s_add_u32 s13, s13, {NW*1024}
    s_cmp_lt_u32 s12, {KV_BYTES}
    s_cbranch_scc1 {lp}
    """)
    for qi in range(NQ):
        if NQ == 2:
            k.e(f"""
            s_lshl_b32 s12, s9, 2
            s_add_u32 s12, s12, s8
            s_lshl_b32 s12, s12, 5
            s_lshl_b32 s13, s10, 1
            s_add_u32 s12, s12, s13
            s_add_u32 s12, s12, {qi}
            """)
        else:
            k.e(f"""
            s_lshl_b32 s12, s9, 2
            s_and_b32 s13, s8, 3
            s_add_u32 s12, s12, s13
            s_lshl_b32 s12, s12, 5
            s_lshl_b32 s13, s10, 1
            s_add_u32 s12, s12, s13
            s_lshr_b32 s13, s8, 2
            s_add_u32 s12, s12, s13
            """)
        k.e(f"s_lshl_b32 s{20+qi}, s12, 10")
        k.e(f"s_add_u32 s12, s{20+qi}, {WS_Q}")
        k.e(f"buffer_load_dwordx4 v[{R.Q[qi]}:{R.Q[qi]+3}], v2, s[4:7], s12 offen")
    km, t1 = R.t[3], R.t[4]
    k.e(f"v_lshlrev_b32 v{t1}, 2, v1")
    k.e(f"s_mov_b32 s12, {WS_KMAX}")
    k.e(f"buffer_load_dword v{km}, v{t1}, s[4:7], s12 offen")
    for qi in range(NQ):
        for i in range(16): k.e(f"v_mov_b32 v{R.O[qi]+i}, 0")
    for p in range(2):
        for i in range(8):
            k.e(f"v_mov_b32 v{R.P[p]+i}, 0")
            k.e(f"v_mov_b32 v{R.V[p]+i}, 0")
    k.e(f"v_mov_b32 v{R.vK}, v2")
    k.e(f"""
    v_and_b32 v3, 31, v1
    v_min_u32 v3, 16, v3
    v_lshlrev_b32 v3, 4, v3
    v_lshrrev_b32 v4, 5, v1
    v_mul_u32_u24 v4, 272, v4
    v_add_u32 v3, v3, v4
    v_add_u32 v{R.vV}, 65536, v3
    """)
    k.e("s_waitcnt vmcnt(0)")
    wave_allreduce_max(k, km, t1)
    k.e(f"s_mov_b32 s14, 0x{f2u(MB_THRESH):08x}")
    k.e("s_mov_b64 s[16:17], 0")
    for qi in range(NQ):
        a, b = R.t[0], R.t[1]
        q = R.Q[qi]
        k.e(f"v_mov_b32 v{a}, 0")
        for i in range(4):
            k.e(f"v_dot2_f32_bf16 v{a}, v{q+i}, v{q+i}, v{a}")
        k.e("s_nop 3")
        k.e(f"v_mov_b32 v{b}, v{a}")
        k.e("s_nop 1")
        k.e(f"v_permlane32_swap_b32 v{a}, v{b}")
        k.e("s_nop 1")
        k.e(f"v_add_f32 v{a}, v{a}, v{b}")
        k.e(f"v_mul_f32 v{a}, v{a}, v{km}")
        k.e(f"v_sqrt_f32 v{a}, v{a}")
        k.e("s_nop 0")
        k.e(f"v_mul_f32 v{a}, 0x{f2u(1.00390625):08x}, v{a}")
        k.e(f"v_cmp_nge_f32 vcc, s14, v{a}")
        k.e("s_or_b64 s[16:17], s[16:17], vcc")
        for i in range(16):
            k.e(f"v_sub_f32 v{R.C[qi]+i}, 0, v{a}")
    k.e("s_barrier")
    if stamps: k.e("s_memtime s[32:33]")
    fast = k.newlabel("fast")
    k.e("s_cmp_eq_u64 s[16:17], 0")
    k.e(f"s_cbranch_scc1 {fast}")
    for qi in range(NQ):
        maxpass(k, R, qi, 12)
    k.lab(fast)
    attn_body(k, R, NQ, U, 12)
    if stamps: k.e("s_memtime s[34:35]")
    k.e("s_nop 15\ns_nop 7")
    for qi in range(NQ):
        O = R.O[qi]
        r = R.t[0]
        k.e(f"v_rcp_f32 v{r}, v{O+8}")
        k.e("s_nop 0")
        for i in range(8):
            k.e(f"v_mul_f32 v{O+i}, v{O+i}, v{r}")
        for i in range(4):
            k.e(f"v_cvt_pk_bf16_f32 v{O+i}, v{O+2*i}, v{O+2*i+1}")
        k.e(f"s_add_u32 s12, s{20+qi}, {WS_O}")
        k.e(f"buffer_store_dwordx4 v[{O}:{O+3}], v2, s[4:7], s12 offen")
    k.e("s_waitcnt vmcnt(0)")
    if stamps:
        k.e("""
        s_memtime s[36:37]
        s_memrealtime s[42:43]
        s_waitcnt lgkmcnt(0)
        s_mov_b32 s50, 256
        s_mov_b32 s51, 0x20000
        s_sub_u32 s32, s32, s30
        s_sub_u32 s34, s34, s30
        s_sub_u32 s36, s36, s30
        s_sub_u32 s42, s42, s40
        s_cmp_eq_u32 s2, 5
        s_cbranch_scc0 """ + done + """
        s_lshl_b32 s12, s8, 4
        v_mov_b32 v3, s12
        v_mov_b32 v4, s32
        v_mov_b32 v5, s34
        v_mov_b32 v6, s36
        v_mov_b32 v7, s42
        v_cmp_eq_u32 vcc, 0, v1
        s_and_saveexec_b64 s[44:45], vcc
        buffer_store_dwordx4 v[4:7], v3, s[48:51], 0 offen
        s_waitcnt vmcnt(0)
        """)
    k.lab(done)
    vg = (R.end + 7) // 8 * 8
    return kernel_text(name, k.text(), vg), (name, 256, 64 * NW, KV_BYTES)

if __name__ == "__main__":
    import sys
    NQ = int(sys.argv[1]); U = int(sys.argv[2])
    kt, la = attn_kernel(NQ, U, stamps=len(sys.argv) > 4)
    open(sys.argv[3], "w").write(assemble_file([la], [kt]))
```

```python
WS_Q    = 0x000000
WS_K    = 0x200000
WS_V    = 0x210000
KV_BYTES = 65536 + 64 * 1088
WS_KMAX = 0x228000
WS_H    = 0x300000
WS_O    = 0xA00000
WS_WD   = 0xC00000
WS_FLAG = 0xF00000
WS_SIZE = 0x10000000
QSCALE = 0.25 * 1.4426950408889634
MB_THRESH = 48.0
WS_STAT = 0x230000
WS_CS   = 0x238000
```

```python
from asmlib import *
from layout import *
from attn import AttnRegs, attn_body, maxpass, wave_allreduce_max, f2u

def poll(k, s_off, target, vt, vz, st, sc, lim=200000):
    lp = k.newlabel("poll"); ok = k.newlabel("pollok")
    k.e(f"s_mov_b32 s{sc}, {lim}")
    k.lab(lp)
    k.e(f"buffer_load_dword v{vt}, v{vz}, s[4:7], s{s_off} offen sc1")
    k.e("s_waitcnt vmcnt(0)")
    k.e(f"v_readfirstlane_b32 s{st}, v{vt}")
    k.e(f"s_sub_u32 s{sc}, s{sc}, 1")
    k.e(f"s_cmp_ge_u32 s{st}, {target}")
    k.e(f"s_cbranch_scc1 {ok}")
    k.e("s_sleep 1")
    k.e(f"s_cmp_lg_u32 s{sc}, 0")
    k.e(f"s_cbranch_scc1 {lp}")
    k.lab(ok)

def stamp(k, i):
    k.e(f"s_memtime s[{60+2*i}:{61+2*i}]")

def stamp_code(k, done):
    stamp(k, 7)
    k.e("s_memrealtime s[42:43]")
    k.e("s_waitcnt lgkmcnt(0)")
    k.e("s_mov_b32 s50, 256\ns_mov_b32 s51, 0x20000")
    k.e("s_sub_u32 s42, s42, s40")
    for i in range(1, 8):
        k.e(f"s_sub_u32 s{60+2*i}, s{60+2*i}, s60")
    k.e(f"s_cmp_eq_u32 s2, STAMP_WG")
    k.e(f"s_cbranch_scc0 {done}")
    k.e("s_lshl_b32 s20, s16, 5")
    k.e("v_mov_b32 v3, s20")
    k.e("v_mov_b32 v4, s42")
    for i in range(1, 4): k.e(f"v_mov_b32 v{4+i}, s{60+2*i}")
    for i in range(4, 8): k.e(f"v_mov_b32 v{4+i}, s{60+2*i}")
    k.e("s_mov_b64 exec, 1")
    k.e("buffer_store_dwordx4 v[4:7], v3, s[48:51], 0 offen")
    k.e("buffer_store_dwordx4 v[8:11], v3, s[48:51], 0 offen offset:16")
    k.e("s_waitcnt vmcnt(0)")

def stamp_code_old(k, done):
    k.e(f"""
    s_memtime s[36:37]
    s_memrealtime s[42:43]
    s_waitcnt lgkmcnt(0)
    s_mov_b32 s50, 256
    s_mov_b32 s51, 0x20000
    s_sub_u32 s32, s32, s30
    s_sub_u32 s34, s34, s30
    s_sub_u32 s36, s36, s30
    s_sub_u32 s42, s42, s40
    s_cmp_eq_u32 s2, 5
    s_cbranch_scc0 {done}
    s_lshl_b32 s20, s16, 4
    v_mov_b32 v3, s20
    v_mov_b32 v4, s32
    v_mov_b32 v5, s34
    v_mov_b32 v6, s36
    v_mov_b32 v7, s42
    s_mov_b64 exec, 1
    buffer_store_dwordx4 v[4:7], v3, s[48:51], 0 offen
    s_waitcnt vmcnt(0)
    """)

def a_role(k, R, NA, KS, U, stamps, do_attn, done):
    NQ = 2
    for qi in range(NQ):
        k.e(f"""
        s_lshl_b32 s20, s17, 1
        s_and_b32 s21, s16, 1
        s_add_u32 s20, s20, s21
        s_lshl_b32 s20, s20, 5
        s_lshl_b32 s21, s18, 2
        s_add_u32 s20, s20, s21
        s_and_b32 s21, s16, 2
        s_add_u32 s20, s20, s21
        s_add_u32 s20, s20, {qi}
        s_lshl_b32 s{24+qi}, s20, 10
        s_add_u32 s20, s{24+qi}, {WS_Q}
        buffer_load_dwordx4 v[{R.Q[qi]}:{R.Q[qi]+3}], v2, s[4:7], s20 offen
        """)
    km, t1 = R.t[3], R.t[4]
    k.e(f"v_lshlrev_b32 v{t1}, 2, v1")
    k.e(f"s_mov_b32 s20, {WS_KMAX}")
    k.e(f"buffer_load_dword v{km}, v{t1}, s[4:7], s20 offen")
    for qi in range(NQ):
        for i in range(16): k.e(f"v_mov_b32 v{R.O[qi]+i}, 0")
    for p in range(2):
        for i in range(8):
            k.e(f"v_mov_b32 v{R.P[p]+i}, 0")
            k.e(f"v_mov_b32 v{R.V[p]+i}, 0")
    k.e(f"v_mov_b32 v{R.vK}, v2")
    k.e(f"""
    v_and_b32 v3, 31, v1
    v_min_u32 v3, 16, v3
    v_lshlrev_b32 v3, 4, v3
    v_lshrrev_b32 v4, 5, v1
    v_mul_u32_u24 v4, 272, v4
    v_add_u32 v3, v3, v4
    v_add_u32 v{R.vV}, 65536, v3
    """)
    k.e("s_waitcnt vmcnt(0)")
    wave_allreduce_max(k, km, t1)
    k.e(f"s_mov_b32 s22, 0x{f2u(MB_THRESH):08x}")
    k.e("s_mov_b64 s[26:27], 0")
    for qi in range(NQ):
        a, b = R.t[0], R.t[1]
        q = R.Q[qi]
        k.e(f"v_mov_b32 v{a}, 0")
        for i in range(4):
            k.e(f"v_dot2_f32_bf16 v{a}, v{q+i}, v{q+i}, v{a}")
        k.e("s_nop 3")
        k.e(f"v_mov_b32 v{b}, v{a}")
        k.e("s_nop 1")
        k.e(f"v_permlane32_swap_b32 v{a}, v{b}")
        k.e("s_nop 1")
        k.e(f"v_add_f32 v{a}, v{a}, v{b}")
        k.e(f"v_mul_f32 v{a}, v{a}, v{km}")
        k.e(f"v_sqrt_f32 v{a}, v{a}")
        k.e("s_nop 0")
        k.e(f"v_mul_f32 v{a}, 0x{f2u(1.00390625):08x}, v{a}")
        k.e(f"v_cmp_nge_f32 vcc, s22, v{a}")
        k.e("s_nop 1")
        k.e("s_or_b64 s[26:27], s[26:27], vcc")
        for i in range(16):
            k.e(f"v_sub_f32 v{R.C[qi]+i}, 0, v{a}")
    k.e("s_barrier")
    if stamps: stamp(k, 1)
    if do_attn:
        fast = k.newlabel("fast")
        k.e("s_cmp_eq_u64 s[26:27], 0")
        k.e(f"s_cbranch_scc1 {fast}")
        for qi in range(NQ):
            maxpass(k, R, qi, 20)
        k.lab(fast)
        attn_body(k, R, NQ, U, 20)
        if stamps: stamp(k, 2)
        k.e("s_nop 15\ns_nop 7")
        for qi in range(NQ):
            O = R.O[qi]
            r = R.t[0]
            k.e(f"v_rcp_f32 v{r}, v{O+8}")
            k.e("s_nop 0")
            for i in range(8):
                k.e(f"v_mul_f32 v{O+i}, v{O+i}, v{r}")
            for i in range(4):
                k.e(f"v_cvt_pk_bf16_f32 v{O+i}, v{O+2*i}, v{O+2*i+1}")
            k.e(f"s_add_u32 s20, s{24+qi}, {WS_O}")
            k.e(f"buffer_store_dwordx4 v[{O}:{O+3}], v2, s[4:7], s20 offen sc1")
        k.e("s_waitcnt vmcnt(0)")
        if stamps: stamp(k, 3)
    elif stamps: stamp(k, 2)
    k.e(f"""
    s_lshl_b32 s20, s17, 7
    s_add_u32 s20, s20, {WS_FLAG}
    v_mov_b32 v3, 1
    v_mov_b32 v4, 0
    s_mov_b64 exec, 1
    buffer_atomic_add v3, v4, s[4:7], s20 offen
    s_mov_b64 exec, -1
    """)
    if stamps: stamp_code(k, done)
    k.e("s_endpgm")

def g_role(k, NA, D, sc_h, stamps, done, base=8, dummy1=False):
    b = base
    acc = [[b + 16 * (2 * a + t) for t in range(2)] for a in range(2)]
    b += 64
    ring = [b + 16 * i for i in range(D)]
    b += 16 * D
    wo = b; b += 64
    xr = b; b += 8
    vx = b; b += 1
    vz = b; b += 1
    vt = b; b += 1
    vw = b; b += 1
    end = b
    ob = ring[0] if D >= 4 else None
    k.e(f"s_sub_u32 s20, s16, {NA}")
    k.e(f"""
    s_mul_i32 s21, s20, {28*16}
    s_lshl_b32 s24, s18, 1
    s_add_u32 s21, s21, s24
    s_lshl_b32 s21, s21, 10
    s_add_u32 s21, s21, {WS_WD}
    s_lshl_b32 s24, s17, 1
    s_mul_i32 s22, s24, 112
    s_mul_i32 s25, s20, 28
    s_add_u32 s22, s22, s25
    s_lshl_b32 s22, s22, 10
    s_add_u32 s22, s22, {WS_H}
    s_add_u32 s23, s22, {112*1024}
    """)
    sc = " sc1" if sc_h else ""
    def loads(i):
        r = ring[i % D]
        k.e(f"buffer_load_dwordx4 v[{r}:{r+3}], v2, s[4:7], s21 offen")
        k.e(f"buffer_load_dwordx4 v[{r+4}:{r+7}], v2, s[4:7], s21 offen offset:1024")
        k.e(f"buffer_load_dwordx4 v[{r+8}:{r+11}], v2, s[4:7], s22 offen offset:{(i%4)*1024}{sc}")
        k.e(f"buffer_load_dwordx4 v[{r+12}:{r+15}], v2, s[4:7], s23 offen offset:{(i%4)*1024}{sc}")
        k.e(f"s_add_u32 s21, s21, 16384")
        if i % 4 == 3:
            k.e("s_add_u32 s22, s22, 4096\ns_add_u32 s23, s23, 4096")
    def mf(A0, A1, B0, B1):
        for (a, t, A, B) in ((0, 0, A0, B0), (1, 0, A1, B0), (0, 1, A0, B1), (1, 1, A1, B1)):
            c = acc[a][t]
            k.e(f"v_mfma_f32_32x32x16_bf16 v[{c}:{c+15}], v[{A}:{A+3}], v[{B}:{B+3}], v[{c}:{c+15}]")
    for i in range(D): loads(i)
    k.e(f"""
    s_lshl_b32 s26, s20, 3
    s_add_u32 s26, s26, 112
    s_lshl_b32 s26, s26, 4
    s_lshl_b32 s24, s18, 1
    s_add_u32 s26, s26, s24
    s_lshl_b32 s26, s26, 10
    s_add_u32 s26, s26, {WS_WD}
    """)
    for i in range(8):
        k.e(f"buffer_load_dwordx4 v[{wo+8*i}:{wo+8*i+3}], v2, s[4:7], s26 offen")
        k.e(f"buffer_load_dwordx4 v[{wo+8*i+4}:{wo+8*i+7}], v2, s[4:7], s26 offen offset:1024")
        if i < 7: k.e("s_add_u32 s26, s26, 16384")
    k.e(f"""
    s_lshl_b32 s24, s20, 6
    v_add_u32 v{vx}, s24, v1
    v_lshrrev_b32 v{vt}, 2, v{vx}
    v_and_b32 v{vx}, 3, v{vx}
    v_lshlrev_b32 v{vx}, 5, v{vx}
    v_lshlrev_b32 v{vw}, 10, v{vt}
    v_add_u32 v{vx}, v{vx}, v{vw}
    s_lshl_b32 s24, s17, 16
    s_lshl_b32 s25, s18, 7
    s_add_u32 s27, s24, s25
    buffer_load_dwordx4 v[{xr}:{xr+3}], v{vx}, s[8:11], s27 offen
    buffer_load_dwordx4 v[{xr+4}:{xr+7}], v{vx}, s[8:11], s27 offen offset:16
    v_mov_b32 v{vz}, 0
    """)
    NX = 18
    for a in range(2):
        for t in range(2):
            for i in range(16): k.e(f"v_mov_b32 v{acc[a][t]+i}, 0")
    k.e(f"s_waitcnt vmcnt({4*D+NX})")
    k.e("s_barrier")
    if stamps: stamp(k, 1)
    if dummy1:
        accd = [acc[0][0], acc[0][1], acc[1][0], acc[1][1]]
        Af = 216; Bf = 232; va = 248
        k.e(f"v_lshlrev_b32 v{va}, 3, v1")
        k.e(f"v_add_u32 v{va}, {KV_BYTES}, v{va}")
        k.e(f"s_mov_b32 s44, {WS_H}")
        k.e(f"s_mov_b32 s45, {WS_WD}")
        k.e(f"s_mov_b32 s46, 32")
        lp = k.newlabel("d1")
        k.lab(lp)
        k.e(f"s_mov_b32 m0, {KV_BYTES}")
        k.e(f"buffer_load_dwordx4 v2, s[4:7], s45 offen lds")
        k.e(f"buffer_load_dwordx4 v[{Bf+8}:{Bf+11}], v2, s[4:7], s44 offen")
        k.e(f"buffer_load_dwordx4 v[{Bf+12}:{Bf+15}], v2, s[4:7], s44 offen offset:1024")
        k.e(f"s_add_u32 s44, s44, 2048\ns_add_u32 s45, s45, 1024")
        for a in range(4):
            k.e(f"ds_read_b64_tr_b16 v[{Af+4*a}:{Af+4*a+1}], v{va} offset:{a*512}")
            k.e(f"ds_read_b64_tr_b16 v[{Af+4*a+2}:{Af+4*a+3}], v{va} offset:{a*512+2048}")
        for a in range(4):
            k.e(f"s_waitcnt lgkmcnt({2*(3-a)})")
            for t in range(2):
                c = accd[(2*a+t) % 4]
                k.e(f"v_mfma_f32_32x32x16_bf16 v[{c}:{c+15}], v[{Af+4*a}:{Af+4*a+3}], v[{Bf+4*t}:{Bf+4*t+3}], v[{c}:{c+15}]")
        k.e(f"s_waitcnt vmcnt(6)")
        k.e(f"s_sub_u32 s46, s46, 1\ns_cmp_lg_u32 s46, 0\ns_cbranch_scc1 {lp}")
        k.e("s_waitcnt vmcnt(0)")
        k.e("s_nop 15\ns_nop 15")
        for a in range(2):
            for t in range(2):
                for i in range(16): k.e(f"v_mov_b32 v{acc[a][t]+i}, 0")
        for i in range(16): k.e(f"v_mov_b32 v{Bf+i}, 0")
        if stamps: stamp(k, 5)
    for i in range(28):
        if i < D: n = 4 * (D - 1) + NX
        else: n = 4 * min(D - 1, 27 - i)
        if i < D and i + D - 1 > 27: raise Exception
        k.e(f"s_waitcnt vmcnt({n})")
        r = ring[i % D]
        mf(r, r + 4, r + 8, r + 12)
        if i + D < 28: loads(i + D)
    if stamps: stamp(k, 2)
    k.e(f"s_lshl_b32 s24, s17, 7\ns_add_u32 s24, s24, {WS_FLAG}")
    poll(k, 24, 8 * NA, vt, vz, 25, 28)
    if stamps: stamp(k, 3)
    k.e(f"""
    s_lshl_b32 s24, s17, 6
    s_lshl_b32 s25, s20, 3
    s_add_u32 s24, s24, s25
    s_lshl_b32 s24, s24, 10
    s_add_u32 s24, s24, {WS_O}
    s_add_u32 s25, s24, {32*1024}
    s_add_u32 s26, s24, 4096
    s_add_u32 s28, s25, 4096
    """)
    for i in range(8):
        so0 = 24 if i < 4 else 26
        so1 = 25 if i < 4 else 28
        k.e(f"buffer_load_dwordx4 v[{ob+8*i}:{ob+8*i+3}], v2, s[4:7], s{so0} offen offset:{(i%4)*1024} sc1")
        k.e(f"buffer_load_dwordx4 v[{ob+8*i+4}:{ob+8*i+7}], v2, s[4:7], s{so1} offen offset:{(i%4)*1024} sc1")
    for i in range(8):
        k.e(f"s_waitcnt vmcnt({2*(7-i)})")
        mf(wo + 8 * i, wo + 8 * i + 4, ob + 8 * i, ob + 8 * i + 4)
    if stamps: stamp(k, 4)
    k.e(f"""
    v_and_b32 v{vt}, 31, v1
    v_mul_u32_u24 v{vt}, 272, v{vt}
    v_lshrrev_b32 v{vw}, 5, v1
    v_lshlrev_b32 v{vw}, 4, v{vw}
    v_add_u32 v{vt}, v{vt}, v{vw}
    s_mul_i32 s24, s20, 17408
    v_add_u32 v{vt}, s24, v{vt}
    s_nop 7
    s_nop 7
    """)
    for a in range(2):
        for t in range(2):
            for q in range(4):
                c = acc[a][t] + 4 * q
                k.e(f"ds_write_b128 v{vt}, v[{c}:{c+3}] offset:{t*32*272 + (32*a + 8*q)*4}")
    k.e("s_waitcnt lgkmcnt(0)")
    k.e("s_barrier")
    if stamps: stamp(k, 5)
    k.e(f"""
    s_lshl_b32 s24, s20, 6
    v_add_u32 v{vt}, s24, v1
    v_lshrrev_b32 v{vw}, 2, v{vt}
    v_mul_u32_u24 v{vw}, 272, v{vw}
    v_and_b32 v{vt}, 3, v{vt}
    v_lshlrev_b32 v{vt}, 6, v{vt}
    v_add_u32 v{vt}, v{vt}, v{vw}
    """)
    rb = acc[0][0]
    for g in range(4):
        for q in range(4):
            k.e(f"ds_read_b128 v[{rb+16*g+4*q}:{rb+16*g+4*q+3}], v{vt} offset:{g*17408+16*q}")
    k.e("s_waitcnt lgkmcnt(0)")
    for i in range(16):
        k.e(f"v_add_f32 v{rb+i}, v{rb+i}, v{rb+16+i}")
        k.e(f"v_add_f32 v{rb+32+i}, v{rb+32+i}, v{rb+48+i}")
    for i in range(16):
        k.e(f"v_add_f32 v{rb+i}, v{rb+i}, v{rb+32+i}")
    for i in range(8):
        k.e(f"v_lshlrev_b32 v{rb+16+2*i}, 16, v{xr+i}")
        k.e(f"v_and_b32 v{rb+16+2*i+1}, 0xffff0000, v{xr+i}")
    for i in range(16):
        k.e(f"v_add_f32 v{rb+i}, v{rb+i}, v{rb+16+i}")
    for i in range(8):
        k.e(f"v_cvt_pk_bf16_f32 v{rb+32+i}, v{rb+2*i}, v{rb+2*i+1}")
    if stamps: stamp(k, 6)
    k.e(f"buffer_store_dwordx4 v[{rb+32}:{rb+35}], v{vx}, s[12:15], s27 offen")
    k.e(f"buffer_store_dwordx4 v[{rb+36}:{rb+39}], v{vx}, s[12:15], s27 offen offset:16")
    k.e("s_waitcnt vmcnt(0)")
    if stamps: stamp_code(k, done)
    return end

def main_kernel(NA=4, U=4, D=4, sc_h=False, name="main_kernel", stamps=False, do_attn=True, gprio=0, aprio=0, dummy1=False):
    k = KB(name)
    NW = NA + 4
    R = AttnRegs(2, 8)
    done = k.newlabel("done")
    glab = k.newlabel("grole")
    k.e(f"""
    s_cmp_ge_u32 s2, 256
    s_cbranch_scc1 {done}
    s_load_dwordx2 s[4:5], s[0:1], 88
    s_load_dwordx2 s[8:9], s[0:1], 0
    s_load_dwordx2 s[12:13], s[0:1], 72
    """)
    if stamps:
        k.e("s_memtime s[60:61]\ns_memrealtime s[40:41]\ns_load_dwordx2 s[48:49], s[0:1], 80")
        for i in range(1, 8): k.e(f"s_mov_b32 s{60+2*i}, 0")
    k.e(f"""
    v_lshrrev_b32 v3, 6, v0
    v_and_b32 v1, 63, v0
    v_readfirstlane_b32 s16, v3
    v_lshlrev_b32 v2, 4, v1
    s_and_b32 s19, s2, 7
    s_lshr_b32 s20, s2, 3
    s_lshr_b32 s17, s19, 1
    s_lshl_b32 s17, s17, 3
    s_and_b32 s21, s20, 7
    s_add_u32 s17, s17, s21
    s_and_b32 s18, s19, 1
    s_lshl_b32 s18, s18, 2
    s_lshr_b32 s21, s20, 3
    s_add_u32 s18, s18, s21
    s_waitcnt lgkmcnt(0)
    s_mov_b32 s6, {WS_SIZE}
    s_mov_b32 s7, 0x20000
    s_mov_b32 s10, {2048*1024}
    s_mov_b32 s11, 0x20000
    s_mov_b32 s14, {2048*1024}
    s_mov_b32 s15, 0x20000
    """)
    lp = k.newlabel("kvdma")
    k.e(f"""
    s_lshl_b32 s20, s16, 10
    s_add_u32 s21, s20, {WS_K}
    """)
    k.lab(lp)
    k.e(f"""
    s_mov_b32 m0, s20
    s_add_u32 s20, s20, {NW*1024}
    buffer_load_dwordx4 v2, s[4:7], s21 offen lds
    s_add_u32 s21, s21, {NW*1024}
    s_cmp_lt_u32 s20, {KV_BYTES}
    s_cbranch_scc1 {lp}
    """)
    k.e(f"s_cmp_ge_u32 s16, {NA}")
    k.e(f"s_cbranch_scc1 {glab}")
    if aprio: k.e(f"s_setprio {aprio}")
    a_role(k, R, NA, 1, U, stamps, do_attn, done)
    k.lab(glab)
    if gprio: k.e(f"s_setprio {gprio}")
    gend = g_role(k, NA, D, sc_h, stamps, done, dummy1=dummy1)
    if dummy1: gend = 256
    k.lab(done)
    vg = (max(R.end, gend) + 7) // 8 * 8
    return kernel_text(name, k.text(), vg), (name, 256, 64 * NW, KV_BYTES + (8192 if dummy1 else 0))

if __name__ == "__main__":
    import sys, argparse
    ap = argparse.ArgumentParser()
    ap.add_argument("out"); ap.add_argument("--U", type=int, default=4); ap.add_argument("--D", type=int, default=4)
    ap.add_argument("--stamps", action="store_true"); ap.add_argument("--noattn", action="store_true")
    ap.add_argument("--dummy1", action="store_true"); ap.add_argument("--wg", type=int, default=5); ap.add_argument("--gprio", type=int, default=0); ap.add_argument("--aprio", type=int, default=0)
    a = ap.parse_args()
    kt, la = main_kernel(U=a.U, D=a.D, stamps=a.stamps, do_attn=not a.noattn, gprio=a.gprio, aprio=a.aprio, dummy1=a.dummy1)
    open(a.out, "w").write(assemble_file([la], [kt]).replace("STAMP_WG", str(a.wg)))
```

```python
from asmlib import *
from layout import *
from attn import f2u, wave_allreduce_max

SLOT = 53248
XOFF, GOFF, UOFF, KVOFF = 0, 16384, 32768, 49152
SCR = 3 * SLOT
LDS_TOTAL = 163840

def allreduce_add(k, xs, y, steps):
    for s in steps:
        if s.startswith("dpp:"):
            k.e("s_nop 1")
            for x in xs: k.e(f"v_add_f32_dpp v{x}, v{x}, v{x} {s[4:]} row_mask:0xf bank_mask:0xf")
        else:
            op = "v_permlane16_swap_b32" if s == "p16" else "v_permlane32_swap_b32"
            for x, t in zip(xs, y): k.e(f"v_mov_b32 v{t}, v{x}")
            k.e("s_nop 1")
            for x, t in zip(xs, y): k.e(f"{op} v{x}, v{t}")
            k.e("s_nop 1")
            for x, t in zip(xs, y): k.e(f"v_add_f32 v{x}, v{x}, v{t}")

def proj_kernel(name="proj_kernel", stamps=False, exp="", rt=False):
    k = KB(name)
    done = k.newlabel("done")
    b = 8
    def al(n, align=2):
        nonlocal b
        b = (b + align - 1) // align * align
        r = b; b += n
        return r
    acc = [[al(16) for _ in range(2)] for _ in range(2)]
    accKV = al(16)
    Bf = [[al(4) for _ in range(2)] for _ in range(2)]
    Af = [[al(4) for _ in range(2)] for _ in range(2)]
    KVf = al(4)
    vB = [al(1, 1) for _ in range(4)]
    vA = [[al(1, 1) for _ in range(4)] for _ in range(2)]
    vKV = al(1, 1)
    vX = al(1, 1)
    vW = [al(2) for _ in range(4)]
    vWs = al(1, 1)
    vKVa = al(2)
    cskv = al(1, 1)
    st2 = al(2)
    cs = [al(1, 1) for _ in range(2)]
    pol = al(2)
    nm = [al(1, 1) for _ in range(2)]
    rs = [al(1, 1) for _ in range(2)]
    t = [al(1, 1) for _ in range(12)]
    X4 = al(4); Y4 = al(4); Z4 = al(4); W4 = al(4)
    big = al(64)
    vend = b
    ONES = 27
    def stamp(i):
        if stamps: k.e(f"s_memtime s[{84+2*i}:{85+2*i}]")

    k.e(f"""
    s_cmp_ge_u32 s2, 256
    s_cbranch_scc1 {done}
    s_load_dwordx16 s[36:51], s[0:1], 0
    s_load_dwordx2 s[52:53], s[0:1], 64
    s_load_dwordx4 s[72:75], s[0:1], 80
    """)
    stamp(0)
    if rt: rt_begin(k, 76)
    k.e(f"""
    v_lshrrev_b32 v3, 6, v0
    v_and_b32 v1, 63, v0
    v_readfirstlane_b32 s28, v3
    v_lshlrev_b32 v2, 4, v1
    s_and_b32 s54, s2, 7
    s_lshr_b32 s55, s2, 3
    s_and_b32 s29, s54, 1
    s_lshl_b32 s29, s29, 3
    s_and_b32 s56, s55, 7
    s_add_u32 s29, s29, s56
    s_lshr_b32 s30, s54, 1
    s_lshl_b32 s30, s30, 2
    s_lshr_b32 s56, s55, 3
    s_add_u32 s30, s30, s56
    s_lshr_b32 s31, s28, 2
    s_and_b32 s32, s28, 3
    s_mov_b32 s{ONES}, 0x3f803f80
    s_and_b32 s35, s30, 3
    s_lshr_b32 s34, s30, 2
    s_lshr_b32 s54, s35, 1
    s_cmp_eq_u32 s54, s31
    s_cselect_b32 s33, 1, 0
    s_cmp_lt_u32 s30, 8
    s_cselect_b32 s33, s33, 0
    s_cselect_b32 s26, 1, 0
    s_lshl_b32 s54, s31, 1
    s_add_u32 s54, s54, s32
    s_and_b32 s25, s54, 3
    s_cmp_lt_u32 s28, 4
    s_cselect_b32 s24, s26, 0
    s_and_b32 s54, s28, 1
    s_lshl_b32 s23, s54, 14
    s_lshr_b32 s54, s28, 1
    s_lshl_b32 s54, s54, 12
    s_add_u32 s23, s23, s54
    s_lshl_b32 s22, s28, 10
    s_lshl_b32 s57, s29, 17
    """)
    tt0, tt1, tt2, tt3, tt4, tt5 = t[0:6]
    k.e(f"""
    v_lshrrev_b32 v{tt0}, 3, v1
    s_lshl_b32 s54, s28, 3
    v_add_u32 v{tt0}, s54, v{tt0}
    v_lshlrev_b32 v{tt0}, 10, v{tt0}
    s_and_b32 s54, s28, 1
    s_lshl_b32 s54, s54, 2
    v_lshrrev_b32 v{tt1}, 4, v1
    v_add_u32 v{tt1}, s54, v{tt1}
    v_and_b32 v{tt1}, 7, v{tt1}
    v_and_b32 v{tt2}, 7, v1
    v_xor_b32 v{tt1}, v{tt1}, v{tt2}
    v_lshlrev_b32 v{tt1}, 4, v{tt1}
    v_add_u32 v{vX}, v{tt0}, v{tt1}
    """)
    k.e(f"""
    s_and_b32 s54, s28, 1
    s_lshr_b32 s55, s28, 1
    v_lshrrev_b32 v{tt0}, 4, v1
    v_and_b32 v{tt1}, 15, v1
    v_lshrrev_b32 v{tt2}, 1, v{tt1}
    v_and_b32 v{tt1}, 1, v{tt1}
    v_lshlrev_b32 v{tt3}, 1, v{tt0}
    v_add_u32 v{tt3}, s54, v{tt3}
    v_xor_b32 v{tt2}, v{tt2}, v{tt3}
    s_lshl_b32 s56, s55, 4
    v_add_u32 v{tt0}, s56, v{tt0}
    v_mul_u32_u24 v{tt3}, 3584, v{tt0}
    v_lshlrev_b32 v{tt4}, 5, v{tt2}
    v_add_u32 v{tt3}, v{tt3}, v{tt4}
    v_lshlrev_b32 v{tt4}, 4, v{tt1}
    v_add_u32 v{tt3}, v{tt3}, v{tt4}
    s_mul_i32 s56, s30, 224
    v_add_u32 v{tt3}, s56, v{tt3}
    v_lshlrev_b32 v{tt5}, 10, v{tt0}
    v_add_u32 v{tt5}, v{tt5}, v{tt4}
    s_lshl_b32 s56, s30, 6
    s_lshl_b32 s55, s54, 5
    s_add_u32 s56, s56, s55
    v_add_u32 v{tt5}, s56, v{tt5}
    v_cmp_eq_u32 vcc, 7, v{tt2}
    v_mov_b32 v{tt0}, 3584
    v_mov_b32 v{tt1}, 1024
    v_cndmask_b32 v{tt3}, v{tt3}, v{tt5}, vcc
    v_cndmask_b32 v{tt0}, v{tt0}, v{tt1}, vcc
    v_lshlrev_b32 v{vWs}, 6, v{tt0}
    v_lshlrev_b32 v{tt1}, 2, v{tt0}
    """)
    k.e(f"""
    v_lshrrev_b32 v{t[6]}, 3, v1
    s_lshl_b32 s55, s28, 6
    v_add_u32 v{t[6]}, s55, v{t[6]}
    v_and_b32 v{t[7]}, 7, v1
    v_lshlrev_b32 v{t[7]}, 2, v{t[7]}
    s_lshr_b32 s58, s29, 1
    s_and_b32 s59, s29, 1
    """)
    k.e("s_waitcnt lgkmcnt(0)")
    if "pro" in exp: stamp(1)
    k.e(f"""
    s_mov_b32 s4, s74
    s_mov_b32 s5, s75
    s_mov_b32 s6, {WS_SIZE}
    s_mov_b32 s7, 0x20000
    s_mov_b32 s8, s36
    s_mov_b32 s9, s37
    s_mov_b32 s10, {2048*1024}
    s_mov_b32 s11, 0x20000
    """)
    CR = big + 40
    def row_loads():
        k.e(f"""
        s_lshr_b32 s58, s29, 1
        s_and_b32 s59, s29, 1
        s_lshl_b32 s55, s29, 7
        s_lshl_b32 s56, s30, 3
        s_add_u32 s55, s55, s56
        s_add_u32 s21, s55, s28
        s_lshl_b32 s55, s21, 10
        buffer_load_dwordx4 v[{X4}:{X4+3}], v2, s[8:11], s55 offen
        """)
        k.e(f"""
        s_cmp_eq_u32 s59, 1
        s_cselect_b32 s12, s50, s48
        s_cselect_b32 s13, s51, s49
        s_mul_i32 s55, s30, 112
        s_lshl_b32 s56, s58, 4
        s_add_u32 s55, s55, s56
        s_lshl_b32 s56, s30, 5
        s_lshl_b32 s60, s59, 4
        s_add_u32 s56, s56, s60
        s_mov_b32 s60, 3584
        s_mov_b32 s14, {512*3584}
        s_cmp_eq_u32 s58, 7
        s_cselect_b32 s12, s38, s12
        s_cselect_b32 s13, s39, s13
        s_cselect_b32 s14, {512*1024}, s14
        s_cselect_b32 s55, s56, s55
        s_cselect_b32 s60, 1024, s60
        s_mov_b32 s15, 0x20000
        s_lshl_b32 s55, s55, 1
        v_mul_lo_u32 v{t[6]}, v{t[6]}, s60
        v_add_u32 v{t[6]}, v{t[6]}, v{t[7]}
        s_lshl_b32 s60, s60, 3
        """)
        for i in range(8):
            k.e(f"buffer_load_dword v{CR+i}, v{t[6]}, s[12:15], s55 offen")
            if i < 7: k.e("s_add_u32 s55, s55, s60")

    NROW = 9
    k.e(f"""
    s_cmp_eq_u32 s54, 1
    s_cselect_b32 s58, s50, s48
    s_cselect_b32 s59, s51, s49
    v_mov_b32 v{tt4}, s58
    v_mov_b32 v{tt5}, s38
    v_cndmask_b32 v{tt4}, v{tt4}, v{tt5}, vcc
    v_mov_b32 v{tt5}, s59
    v_mov_b32 v{tt0}, s39
    v_cndmask_b32 v{tt5}, v{tt5}, v{tt0}, vcc
    v_add_co_u32 v{vW[0]}, vcc, v{tt3}, v{tt4}
    v_addc_co_u32 v{vW[0]+1}, vcc, 0, v{tt5}, vcc
    """)
    for i in range(1, 4):
        k.e(f"v_add_co_u32 v{vW[i]}, vcc, v{vW[i-1]}, v{tt1}")
        k.e(f"v_addc_co_u32 v{vW[i]+1}, vcc, 0, v{vW[i-1]+1}, vcc")
    k.e(f"""
    v_lshrrev_b32 v{tt0}, 2, v1
    s_lshl_b32 s54, s28, 4
    v_add_u32 v{tt0}, s54, v{tt0}
    v_lshlrev_b32 v{tt0}, 5, v{tt0}
    v_and_b32 v{tt1}, 1, v1
    v_lshlrev_b32 v{tt1}, 4, v{tt1}
    v_add_u32 v{tt0}, v{tt0}, v{tt1}
    v_and_b32 v{tt1}, 2, v1
    v_cmp_eq_u32 vcc, 0, v{tt1}
    v_mov_b32 v{tt2}, s42
    v_mov_b32 v{tt3}, s40
    v_cndmask_b32 v{tt2}, v{tt2}, v{tt3}, vcc
    v_mov_b32 v{tt3}, s43
    v_mov_b32 v{tt4}, s41
    v_cndmask_b32 v{tt3}, v{tt3}, v{tt4}, vcc
    v_add_co_u32 v{vKVa}, vcc, v{tt0}, v{tt2}
    v_addc_co_u32 v{vKVa+1}, vcc, 0, v{tt3}, vcc
    """)
    def dma_piece(st, which):
        slot = (st % 3) * SLOT
        if which == "KV":
            skip = k.newlabel("nokv")
            k.e(f"s_cmp_eq_u32 s24, 0")
            k.e(f"s_cbranch_scc1 {skip}")
            k.e(f"s_add_u32 m0, s22, {slot + KVOFF}")
            k.e("s_nop 0")
            k.e(f"global_load_lds_dwordx4 v[{vKVa}:{vKVa+1}], off")
            k.e(f"v_add_co_u32 v{vKVa}, vcc, 2048, v{vKVa}")
            k.e(f"v_addc_co_u32 v{vKVa+1}, vcc, 0, v{vKVa+1}, vcc")
            k.lab(skip)
        elif which[0] == "X":
            j = int(which[1])
            k.e(f"s_add_u32 m0, s22, {slot + XOFF + j*8192}")
            k.e(f"s_add_u32 s55, s57, {j*65536 + st*128}")
            k.e(f"buffer_load_dwordx4 v{vX}, s[8:11], s55 offen lds")
        else:
            i = int(which[1])
            k.e(f"s_add_u32 m0, s23, {slot + GOFF + i*1024}")
            k.e("s_nop 0")
            k.e(f"global_load_lds_dwordx4 v[{vW[i]}:{vW[i]+1}], off")
            k.e(f"v_add_co_u32 v{vW[i]}, vcc, v{vWs}, v{vW[i]}")
            k.e(f"v_addc_co_u32 v{vW[i]+1}, vcc, 0, v{vW[i]+1}, vcc")
    PIECES = ["KV", "X0", "X1", "W0", "W1", "W2", "W3"]
    def issue_stage(st):
        for p in PIECES: dma_piece(st, p)
    if "pro" in exp: stamp(2)
    issue_stage(0)
    if "pro" in exp: stamp(3)
    k.e("s_barrier")
    row_loads()
    issue_stage(1)
    if "pro" in exp: stamp(4)
    k.e(f"""
    v_and_b32 v{tt0}, 31, v1
    v_lshrrev_b32 v{tt1}, 5, v1
    v_lshrrev_b32 v{tt2}, 1, v{tt0}
    v_and_b32 v{tt2}, 7, v{tt2}
    v_xor_b32 v{tt2}, v{tt2}, v{tt1}
    s_lshl_b32 s54, s31, 6
    v_add_u32 v{tt0}, s54, v{tt0}
    v_lshlrev_b32 v{tt0}, 7, v{tt0}
    """)
    for q in range(4):
        k.e(f"""
        s_add_u32 s54, s25, {q}
        s_and_b32 s54, s54, 3
        s_lshl_b32 s54, s54, 1
        v_xor_b32 v{tt3}, s54, v{tt2}
        v_lshlrev_b32 v{tt3}, 4, v{tt3}
        v_add_u32 v{vB[q]}, v{tt0}, v{tt3}
        """)
    k.e(f"""
    v_lshrrev_b32 v{tt0}, 4, v1
    v_and_b32 v{tt1}, 1, v{tt0}
    v_lshrrev_b32 v{tt0}, 1, v{tt0}
    v_and_b32 v{tt2}, 15, v1
    v_lshrrev_b32 v{tt3}, 2, v{tt2}
    v_and_b32 v{tt2}, 3, v{tt2}
    v_lshlrev_b32 v{tt4}, 3, v{tt0}
    v_add_u32 v{tt4}, v{tt4}, v{tt3}
    v_lshlrev_b32 v{tt5}, 6, v{tt4}
    v_lshlrev_b32 v{t[6]}, 5, v{tt1}
    v_add_u32 v{tt5}, v{tt5}, v{t[6]}
    v_lshlrev_b32 v{t[6]}, 3, v{tt2}
    v_add_u32 v{tt5}, v{tt5}, v{t[6]}
    s_lshl_b32 s54, s25, 10
    s_add_u32 s54, s54, {KVOFF}
    v_add_u32 v{vKV}, s54, v{tt5}
    v_lshlrev_b32 v{tt4}, 8, v{tt4}
    v_lshlrev_b32 v{tt5}, 14, v{tt1}
    v_add_u32 v{tt4}, v{tt4}, v{tt5}
    v_lshlrev_b32 v{tt5}, 3, v{tt2}
    v_add_u32 v{tt4}, v{tt4}, v{tt5}
    v_lshlrev_b32 v{tt3}, 1, v{tt3}
    v_add_u32 v{tt3}, v{tt3}, v{tt1}
    """)
    for ai in range(2):
        k.e(f"""
        s_lshl_b32 s54, s32, 1
        s_add_u32 s54, s54, {ai}
        v_xor_b32 v{tt5}, s54, v{tt3}
        v_lshlrev_b32 v{tt5}, 5, v{tt5}
        v_add_u32 v{tt5}, v{tt5}, v{tt4}
        """)
        for q in range(4):
            k.e(f"""
            s_add_u32 s54, s25, {q}
            s_and_b32 s54, s54, 3
            s_lshl_b32 s54, s54, 12
            s_add_u32 s54, s54, {GOFF}
            v_add_u32 v{vA[ai][q]}, s54, v{tt5}
            """)
    def stats_code(k):
        u = [big + i for i in range(32)]
        for i in range(4):
            k.e(f"v_lshlrev_b32 v{u[2*i]}, 16, v{X4+i}")
            k.e(f"v_and_b32 v{u[2*i+1]}, 0xffff0000, v{X4+i}")
        k.e(f"v_add_f32 v{u[8]}, v{u[0]}, v{u[1]}")
        k.e(f"v_mul_f32 v{u[9]}, v{u[0]}, v{u[0]}")
        k.e(f"v_fma_f32 v{u[9]}, v{u[1]}, v{u[1]}, v{u[9]}")
        for i in range(2, 8):
            k.e(f"v_add_f32 v{u[8]}, v{u[8]}, v{u[i]}")
            k.e(f"v_fma_f32 v{u[9]}, v{u[i]}, v{u[i]}, v{u[9]}")
        c = [u[16], u[17]]
        k.e(f"v_lshlrev_b32 v{c[0]}, 16, v{CR}")
        k.e(f"v_and_b32 v{c[1]}, 0xffff0000, v{CR}")
        for i in range(1, 8):
            k.e(f"v_lshlrev_b32 v{u[0]}, 16, v{CR+i}")
            k.e(f"v_and_b32 v{u[1]}, 0xffff0000, v{CR+i}")
            k.e(f"v_add_f32 v{c[0]}, v{c[0]}, v{u[0]}")
            k.e(f"v_add_f32 v{c[1]}, v{c[1]}, v{u[1]}")
        allreduce_add(k, [u[8], u[9]], [u[10], u[11]], ["dpp:quad_perm:[1,0,3,2]", "dpp:quad_perm:[2,3,0,1]", "dpp:row_half_mirror"])
        allreduce_add(k, [u[8], u[9], c[0], c[1]], [u[10], u[11], u[12], u[13]], ["dpp:row_ror:8", "p16", "p32"])
        S, Q = u[8], u[9]
        k.e(f"""
        v_mul_f32 v{S}, 0x{f2u(1/512):08x}, v{S}
        v_mul_f32 v{Q}, 0x{f2u(1/512):08x}, v{Q}
        v_fma_f32 v{Q}, -v{S}, v{S}, v{Q}
        v_max_f32 v{Q}, 0, v{Q}
        v_cvt_pk_bf16_f32 v{u[0]}, v{S}, v{Q}
        v_lshlrev_b32 v{u[2]}, 16, v{u[0]}
        v_and_b32 v{u[3]}, 0xffff0000, v{u[0]}
        v_add_f32 v{u[3]}, 0x{f2u(1e-5):08x}, v{u[3]}
        v_cvt_pk_bf16_f32 v{u[3]}, v{u[3]}, v{u[3]}
        v_and_b32 v{u[3]}, 0xffff0000, v{u[3]}
        v_sqrt_f32 v{u[3]}, v{u[3]}
        v_lshlrev_b32 v{u[4]}, 3, v1
        v_cvt_pk_bf16_f32 v{u[3]}, v{u[3]}, v{u[3]}
        v_and_b32 v{u[3]}, 0xffff0000, v{u[3]}
        v_rcp_f32 v{u[3]}, v{u[3]}
        v_xor_b32 v{u[2]}, 0x80000000, v{u[2]}
        s_lshl_b32 s55, s21, 3
        s_add_u32 s55, s55, {WS_STAT}
        s_lshl_b32 s54, s28, 6
        s_add_u32 s54, s54, {SCR}
        v_add_u32 v{u[5]}, s54, v{u[4]}
        v_mov_b32 v{u[4]}, 0
        s_mov_b64 exec, 1
        buffer_store_dwordx2 v[{u[2]}:{u[3]}], v{u[4]}, s[4:7], s55 offen sc1
        s_mov_b64 exec, 0xff
        ds_write_b64 v{u[5]}, v[{c[0]}:{c[1]}]
        s_mov_b64 exec, -1
        """)

    kk = KB("tmp"); stats_code(kk)
    sl = kk.l
    ti = next(i for i, l in enumerate(sl) if "s_lshl_b32 s55, s21, 3" in l)
    body_l, tail_l = sl[:ti], sl[ti:]
    nch = 5
    per = (len(body_l) + nch - 1) // nch
    chunks = [body_l[i*per:(i+1)*per] for i in range(nch)]
    chunks[-1] = chunks[-1] + tail_l
    def emit_chunk(c):
        def f():
            k.l.extend(c)
        return f
    k.e(f"v_mov_b32 v{cskv}, 0")
    k.e(f"""
    v_mov_b32 v{W4}, -1
    v_mov_b32 v{W4+1}, -1
    v_mov_b32 v{W4+2}, -1
    v_mov_b32 v{W4+3}, -1
    s_lshl_b32 s54, s2, 13
    s_add_u32 s54, s54, s22
    s_add_u32 s54, s54, {WS_O}
    buffer_store_dwordx4 v[{W4}:{W4+3}], v2, s[4:7], s54 offen
    """)
    nz = k.newlabel("noz")
    k.e(f"""
    s_or_b32 s54, s2, s28
    s_cmp_lg_u32 s54, 0
    s_cbranch_scc1 {nz}
    v_mov_b32 v{Y4}, 0
    v_mov_b32 v{Y4+1}, 0
    v_mov_b32 v{Y4+2}, 0
    v_mov_b32 v{Y4+3}, 0
    s_mov_b32 s54, {WS_FLAG}
    buffer_store_dwordx4 v[{Y4}:{Y4+3}], v2, s[4:7], s54 offen
    buffer_store_dwordx4 v[{Y4}:{Y4+3}], v2, s[4:7], s54 offen offset:1024
    buffer_store_dwordx4 v[{Y4}:{Y4+3}], v2, s[4:7], s54 offen offset:2048
    buffer_store_dwordx4 v[{Y4}:{Y4+3}], v2, s[4:7], s54 offen offset:3072
    """)
    k.lab(nz)

    addr_regs = vB + vA[0] + vA[1] + [vKV]
    def read_list(g):
        st, q = divmod(g, 4)
        imm = SLOT if st % 3 == 1 else 0
        bu = g & 1
        out = []
        for tj in range(2):
            out.append(f"ds_read_b128 v[{Bf[bu][tj]}:{Bf[bu][tj]+3}], v{vB[q]} offset:{imm + tj*4096}")
        for ai in range(2):
            for jj in range(2):
                r = Af[bu][ai] + 2 * jj
                out.append(f"ds_read_b64_tr_b16 v[{r}:{r+1}], v{vA[ai][q]} offset:{imm + jj*1024}")
        return out
    def kv_reads(g):
        st, q = divmod(g, 4)
        imm = SLOT if st % 3 == 1 else 0
        sk = k.newlabel("nokvr")
        k.e(f"s_cmp_eq_u32 s33, 0\ns_cbranch_scc1 {sk}")
        for jj in range(2):
            k.e(f"ds_read_b64_tr_b16 v[{KVf+2*jj}:{KVf+2*jj+1}], v{vKV} offset:{imm + jj*256}")
        k.lab(sk)
    def kv_mfma(g):
        bu = g & 1
        sk = k.newlabel("nokvm"); l1 = k.newlabel("kv1")
        k.e(f"s_cmp_eq_u32 s33, 0\ns_cbranch_scc1 {sk}")
        c = accKV
        k.e(f"s_bitcmp1_b32 s35, 0\ns_cbranch_scc1 {l1}")
        ld = k.newlabel("kvd")
        for tj in range(2):
            if tj == 1: k.lab(l1)
            lv = k.newlabel("kvv")
            B = Bf[bu][tj]
            k.e(f"s_cmp_eq_u32 s34, 1\ns_cbranch_scc1 {lv}")
            cin = "0" if g == 0 else f"v[{c}:{c+15}]"
            k.e(f"v_mfma_f32_32x32x16_bf16 v[{c}:{c+15}], v[{KVf}:{KVf+3}], v[{B}:{B+3}], {cin}")
            k.e(f"s_branch {ld}")
            k.lab(lv)
            k.e(f"v_mfma_f32_32x32x16_bf16 v[{c}:{c+15}], v[{B}:{B+3}], v[{KVf}:{KVf+3}], {cin}")
            if tj == 0: k.e(f"s_branch {ld}")
        k.lab(ld)
        for r in range(4):
            k.e(f"v_dot2_f32_bf16 v{cskv}, v{KVf+r}, s{ONES}, v{cskv}")
        k.lab(sk)
    def kstep(gc, rd, extras):
        ms = []
        if gc is not None:
            bu = gc & 1
            for ai in range(2):
                for tj in range(2):
                    c = acc[ai][tj]; A = Af[bu][ai]; B = Bf[bu][tj]
                    cin = "0" if gc == 0 else f"v[{c}:{c+15}]"
                    ms.append(f"v_mfma_f32_32x32x16_bf16 v[{c}:{c+15}], v[{A}:{A+3}], v[{B}:{B+3}], {cin}")
        if "nomfma" in exp: ms = []
        if "noreads" in exp: rd = []
        extras = list(extras)
        slots = [rd[0:3], rd[3:6], [], []]
        for i in range(4):
            if i < len(ms): k.e(ms[i])
            for r in slots[i]: k.e(r)
            if i >= 2 and extras: extras.pop(0)()
        for e in extras: e()
        if gc is not None and gc % 4 == 0: kv_mfma(gc)

    WDL = 2 * SLOT
    def wd_issue():
        k.e(f"""
        v_lshrrev_b32 v{t[6]}, 2, v1
        v_lshlrev_b32 v{t[6]}, 10, v{t[6]}
        v_and_b32 v{t[7]}, 3, v1
        v_lshlrev_b32 v{t[7]}, 4, v{t[7]}
        v_add_u32 v{t[6]}, v{t[6]}, v{t[7]}
        s_mul_i32 s64, s2, 9
        s_add_u32 s64, s64, s28
        s_mov_b32 s71, 0x20000
        """)
        for rep in range(2):
            sk = k.newlabel("wdskip")
            if rep == 1:
                k.e(f"s_cmp_lg_u32 s28, 0\ns_cbranch_scc1 {sk}")
                k.e("s_add_u32 s64, s64, 8")
            k.e(f"""
            s_lshr_b32 s65, s64, 4
            s_and_b32 s66, s64, 15
            s_cmp_lt_u32 s65, 112
            s_cselect_b32 s68, s52, s44
            s_cselect_b32 s69, s53, s45
            s_mov_b32 s70, {512*1024}
            s_cselect_b32 s70, {1792*1024}, s70
            s_cselect_b32 s67, 0, 112
            s_sub_u32 s65, s65, s67
            s_lshl_b32 s65, s65, 14
            s_lshl_b32 s66, s66, 6
            s_add_u32 s65, s65, s66
            s_add_u32 m0, s22, {WDL + rep*8192}
            s_nop 0
            buffer_load_dwordx4 v{t[6]}, s[68:71], s65 offen lds
            """)
            if rep == 1: k.lab(sk)
    def cs_publish():
        sk = k.newlabel("nocs")
        k.e(f"s_cmp_lg_u32 s28, 0\ns_cbranch_scc1 {sk}")
        k.e(f"""
        v_and_b32 v{t[6]}, 15, v1
        v_lshlrev_b32 v{t[6]}, 2, v{t[6]}
        v_add_u32 v{t[7]}, {SCR}, v{t[6]}
        """)
        for w in range(8): k.e(f"ds_read_b32 v{big+w}, v{t[7]} offset:{w*64}")
        k.e("s_waitcnt lgkmcnt(0)")
        for w in range(1, 8): k.e(f"v_add_f32 v{big}, v{big}, v{big+w}")
        k.e(f"""
        s_lshl_b32 s54, s30, 10
        s_lshl_b32 s55, s29, 6
        s_add_u32 s54, s54, s55
        s_add_u32 s54, s54, {WS_CS}
        s_mov_b64 exec, 0xffff
        buffer_store_dword v{big}, v{t[6]}, s[4:7], s54 offen sc1
        s_mov_b64 exec, -1
        """)
        k.lab(sk)
    def signal():
        sk = k.newlabel("nosig")
        k.e(f"s_cmp_lg_u32 s28, 0\ns_cbranch_scc1 {sk}")
        k.e(f"""
        s_mov_b32 s16, s72
        s_mov_b32 s17, s73
        s_mov_b32 s18, 256
        s_mov_b32 s19, 0x20000
        s_lshl_b32 s54, s29, 4
        s_add_u32 s54, s54, s30
        v_mov_b32 v{t[6]}, 1
        v_mov_b32 v{t[7]}, 0
        s_mov_b64 exec, 1
        buffer_store_byte v{t[6]}, v{t[7]}, s[16:19], s54 offen sc1
        s_mov_b64 exec, -1
        """)
        k.lab(sk)
    def poll_issue():
        k.e(f"""
        s_mov_b32 s16, s72
        s_mov_b32 s17, s73
        s_mov_b32 s18, 256
        s_mov_b32 s19, 0x20000
        v_lshlrev_b32 v{t[7]}, 2, v1
        buffer_load_dword v{pol}, v{t[7]}, s[16:19], 0 offen sc1
        """)
    def poll_check_and_load():
        ok = k.newlabel("pok"); lp = k.newlabel("plp")
        k.e(f"s_mov_b32 s61, 200000")
        k.lab(lp)
        k.e(f"""
        v_cmp_ne_u32 vcc, 0x01010101, v{pol}
        s_nop 1
        s_cmp_eq_u64 vcc, 0
        s_cbranch_scc1 {ok}
        s_sleep 2
        """)
        poll_issue()
        k.e(f"""
        s_waitcnt vmcnt(0)
        s_sub_u32 s61, s61, 1
        s_cmp_lg_u32 s61, 0
        s_cbranch_scc1 {lp}
        """)
        k.lab(ok)
        k.e(f"""
        s_lshl_b32 s54, s29, 7
        s_lshl_b32 s55, s31, 6
        s_add_u32 s54, s54, s55
        s_lshl_b32 s54, s54, 3
        s_add_u32 s54, s54, {WS_STAT}
        v_lshlrev_b32 v{t[6]}, 3, v1
        buffer_load_dwordx2 v[{st2}:{st2+1}], v{t[6]}, s[4:7], s54 offen sc1
        s_lshl_b32 s54, s30, 10
        s_lshl_b32 s55, s32, 8
        s_add_u32 s54, s54, s55
        s_add_u32 s54, s54, {WS_CS}
        v_and_b32 v{t[6]}, 31, v1
        v_lshlrev_b32 v{t[6]}, 2, v{t[6]}
        buffer_load_dword v{cs[0]}, v{t[6]}, s[4:7], s54 offen sc1
        buffer_load_dword v{cs[1]}, v{t[6]}, s[4:7], s54 offen offset:128 sc1
        """)
    n = 6
    cur_add = 0
    for g in range(32):
        st, q = divmod(g, 4)
        extras = []
        if q == 0:
            if st == 0: allowed = 16
            elif st == 1: allowed = 8
            elif st <= 5: allowed = n
            elif st == 6: allowed = n + 1
            else: allowed = 1
            if st == 3:
                l0 = k.newlabel("w0w"); l1 = k.newlabel("w0e")
                k.e(f"s_cmp_eq_u32 s28, 0\ns_cbranch_scc1 {l0}")
                k.e(f"s_waitcnt vmcnt({allowed}) lgkmcnt(0)")
                k.e(f"s_branch {l1}")
                k.lab(l0)
                k.e(f"s_waitcnt vmcnt({allowed + 1}) lgkmcnt(0)")
                k.lab(l1)
            else:
                k.e(f"s_waitcnt vmcnt({allowed}) lgkmcnt(0)")
            k.e("s_barrier")
            if st < 7 and "pro" not in exp: stamp(1 + st)
            if st == 0 and "pro" in exp: stamp(7)
            want = 2 * SLOT if st % 3 == 2 else 0
            if want != cur_add:
                d = want - cur_add
                for r in addr_regs:
                    if d > 0: k.e(f"v_add_u32 v{r}, {d}, v{r}")
                    else: k.e(f"v_subrev_u32 v{r}, {-d}, v{r}")
                cur_add = want
            kv_reads(g)
        if st <= 5 and "nodma" not in exp:
            sched = {0: ["KV", "X0"], 1: ["X1", "W0"], 2: ["W1", "W2"], 3: ["W3"]}[q]
            extras = [(lambda p=p: dma_piece(st + 2, p)) for p in sched]
        if st == 0 and q == 1: extras = [lambda: k.e("s_waitcnt vmcnt(8)"), emit_chunk(chunks[0])] + extras + [emit_chunk(chunks[1])]
        if st == 0 and q == 2: extras = [emit_chunk(chunks[2])] + extras + [emit_chunk(chunks[3])]
        if st == 0 and q == 3: extras = extras + [emit_chunk(chunks[4])]
        if st == 1 and q == 0: extras = [cs_publish] + extras
        if st == 2 and q == 0: extras = [signal] + extras
        if st == 5 and q == 3: extras.append(poll_issue)
        if st == 6 and q == 0: extras.append(wd_issue)
        if st == 7 and q == 0: extras.append(poll_check_and_load)
        kstep(g - 1 if g > 0 else None, read_list(g), extras)
        if q != 3: k.e("s_waitcnt lgkmcnt(0)")
    k.e("s_waitcnt lgkmcnt(0)")
    kstep(31, [], [])
    stamp(8)
    C = 2 * SLOT
    RSO, KVO = C + 24576, C + 28672
    t0, t1, t2, t3, t4, t5, t6, t7 = t[0:8]
    k.e("s_waitcnt vmcnt(0)")
    k.e(f"""
    v_lshrrev_b32 v{t0}, 4, v1
    v_and_b32 v{t1}, 1, v{t0}
    v_lshrrev_b32 v{t0}, 1, v{t0}
    v_and_b32 v{t2}, 15, v1
    v_lshrrev_b32 v{t3}, 2, v{t2}
    v_and_b32 v{t2}, 3, v{t2}
    v_lshlrev_b32 v{t0}, 2, v{t0}
    v_add_u32 v{t0}, v{t0}, v{t3}
    v_lshlrev_b32 v{t0}, 6, v{t0}
    v_lshlrev_b32 v{t1}, 5, v{t1}
    v_add_u32 v{t0}, v{t0}, v{t1}
    v_lshlrev_b32 v{t2}, 3, v{t2}
    v_add_u32 v{t0}, v{t0}, v{t2}
    s_add_u32 s54, s22, {WDL}
    v_add_u32 v{t0}, s54, v{t0}
    ds_read_b64_tr_b16 v[{big}:{big+1}], v{t0}
    ds_read_b64_tr_b16 v[{big+2}:{big+3}], v{t0} offset:512
    ds_read_b64_tr_b16 v[{big+4}:{big+5}], v{t0} offset:8192
    ds_read_b64_tr_b16 v[{big+6}:{big+7}], v{t0} offset:8704
    """)
    sk = k.newlabel("norst")
    k.e(f"""
    s_cmp_lg_u32 s32, 0
    s_cbranch_scc1 {sk}
    s_lshl_b32 s54, s31, 8
    s_add_u32 s54, s54, {RSO}
    v_lshlrev_b32 v{t1}, 2, v1
    v_add_u32 v{t2}, s54, v{t1}
    ds_write_b32 v{t2}, v{st2+1}
    """)
    k.lab(sk)
    k.e(f"""
    v_mov_b32 v{nm[0]}, v{st2}
    v_mov_b32 v{nm[1]}, v{st2}
    v_mov_b32 v{rs[0]}, v{st2+1}
    v_mov_b32 v{rs[1]}, v{st2+1}
    v_cmp_gt_u32 vcc, 32, v1
    v_permlane32_swap_b32 v{nm[0]}, v{nm[1]}
    v_permlane32_swap_b32 v{rs[0]}, v{rs[1]}
    v_cndmask_b32 v{cs[0]}, 0, v{cs[0]}, vcc
    v_cndmask_b32 v{cs[1]}, 0, v{cs[1]}, vcc
    """)
    for tj, Q4 in ((0, Z4), (1, W4)):
        k.e(f"v_lshrrev_b32 v{t2}, 16, v{nm[tj]}")
        k.e(f"v_or_b32 v{Q4}, v{t2}, v{nm[tj]}")
        for i in range(1, 4): k.e(f"v_mov_b32 v{Q4+i}, 0")
    def hilo(src, Q4):
        k.e(f"v_cvt_pk_bf16_f32 v{t2}, v{src}, v{src}")
        k.e(f"v_lshlrev_b32 v{t2}, 16, v{t2}")
        k.e(f"v_sub_f32 v{t2}, v{src}, v{t2}")
        k.e(f"v_cvt_pk_bf16_f32 v{Q4}, v{src}, v{t2}")
        for i in range(1, 4): k.e(f"v_mov_b32 v{Q4+i}, 0")
    hilo(cs[0], X4); hilo(cs[1], Y4); hilo(cskv, KVf)
    k.e("s_nop 1")
    for ai, A in ((0, X4), (1, Y4)):
        for tj, B in ((0, Z4), (1, W4)):
            c = acc[ai][tj]
            k.e(f"v_mfma_f32_32x32x16_bf16 v[{c}:{c+15}], v[{A}:{A+3}], v[{B}:{B+3}], v[{c}:{c+15}]")
    k.e(f"""
    s_mul_i32 s64, s2, 9
    s_add_u32 s64, s64, s28
    s_lshl_b32 s65, s64, 10
    s_add_u32 s65, s65, {WS_WD}
    s_waitcnt lgkmcnt(0)
    buffer_store_dwordx4 v[{big}:{big+3}], v2, s[4:7], s65 offen
    """)
    sk = k.newlabel("wdf")
    k.e(f"s_cmp_lg_u32 s28, 0\ns_cbranch_scc1 {sk}")
    k.e("s_add_u32 s65, s65, 8192")
    k.e(f"buffer_store_dwordx4 v[{big+4}:{big+7}], v2, s[4:7], s65 offen")
    k.lab(sk)
    sk = k.newlabel("nokvx"); l1 = k.newlabel("kx1")
    c = accKV
    k.e(f"s_cmp_eq_u32 s33, 0\ns_cbranch_scc1 {sk}")
    k.e(f"s_bitcmp1_b32 s35, 0\ns_cbranch_scc1 {l1}")
    lw = k.newlabel("kvw")
    for tj, B in ((0, Z4), (1, W4)):
        if tj == 1: k.lab(l1)
        lv = k.newlabel("kxv")
        k.e(f"s_cmp_eq_u32 s34, 1\ns_cbranch_scc1 {lv}")
        k.e(f"v_mfma_f32_32x32x16_bf16 v[{c}:{c+15}], v[{KVf}:{KVf+3}], v[{B}:{B+3}], v[{c}:{c+15}]")
        k.e(f"s_branch {lw}")
        k.lab(lv)
        k.e(f"v_mfma_f32_32x32x16_bf16 v[{c}:{c+15}], v[{B}:{B+3}], v[{KVf}:{KVf+3}], v[{c}:{c+15}]")
        if tj == 0: k.e(f"s_branch {lw}")
    k.lab(lw)
    k.e(f"""
    s_lshl_b32 s54, s32, 12
    s_add_u32 s54, s54, {KVO}
    v_add_u32 v{t2}, s54, v2
    s_nop 15
    s_nop 3
    """)
    for q in range(4):
        k.e(f"ds_write_b128 v{t2}, v[{c+4*q}:{c+4*q+3}] offset:{q*1024}")
    k.lab(sk)
    skb = k.newlabel("nobar")
    k.e(f"s_cmp_eq_u32 s26, 0\ns_cbranch_scc1 {skb}")
    k.e("s_waitcnt lgkmcnt(0)")
    k.e("s_barrier")
    k.lab(skb)
    sk = k.newlabel("nokvf"); lV = k.newlabel("kvfV")
    k.e(f"s_cmp_eq_u32 s33, 0\ns_cbranch_scc1 {sk}")
    k.e(f"s_cmp_lg_u32 s32, 0\ns_cbranch_scc1 {sk}")
    k.e(f"v_add_u32 v{t2}, {KVO}, v2")
    for p in range(4):
        for q in range(4):
            k.e(f"ds_read_b128 v[{big+16*p+4*q}:{big+16*p+4*q+3}], v{t2} offset:{p*4096+q*1024}")
    k.e("s_lshl_b32 s54, s29, 2\ns_add_u32 s54, s54, s35")
    k.e("s_waitcnt lgkmcnt(0)")
    for i in range(16):
        k.e(f"v_add_f32 v{big+i}, v{big+i}, v{big+16+i}")
        k.e(f"v_add_f32 v{big+32+i}, v{big+32+i}, v{big+48+i}")
    for i in range(16):
        k.e(f"v_add_f32 v{big+i}, v{big+i}, v{big+32+i}")
    k.e(f"s_cmp_eq_u32 s34, 1\ns_cbranch_scc1 {lV}")
    k.e(f"s_bitcmp1_b32 s35, 0")
    k.e(f"s_cselect_b64 vcc, -1, 0")
    k.e(f"v_cndmask_b32 v{t3}, v{rs[0]}, v{rs[1]}, vcc")
    for i in range(8): k.e(f"v_mul_f32 v{big+i}, v{big+i}, v{t3}")
    for i in range(4): k.e(f"v_cvt_pk_bf16_f32 v{big+16+i}, v{big+2*i}, v{big+2*i+1}")
    k.e(f"s_lshl_b32 s55, s54, 10\ns_add_u32 s55, s55, {WS_K}")
    k.e(f"buffer_store_dwordx4 v[{big+16}:{big+19}], v2, s[4:7], s55 offen")
    k.e(f"v_mov_b32 v{t3}, 0")
    for i in range(4): k.e(f"v_dot2_f32_bf16 v{t3}, v{big+16+i}, v{big+16+i}, v{t3}")
    k.e("s_nop 3")
    k.e(f"v_mov_b32 v{t4}, v{t3}")
    k.e("s_nop 1")
    k.e(f"v_permlane32_swap_b32 v{t3}, v{t4}")
    k.e("s_nop 1")
    k.e(f"v_add_f32 v{t3}, v{t3}, v{t4}")
    wave_allreduce_max(k, t3, t4)
    k.e(f"s_lshl_b32 s55, s54, 2\ns_add_u32 s55, s55, {WS_KMAX}")
    k.e(f"v_mov_b32 v{t4}, 0")
    k.e("s_mov_b64 exec, 1")
    k.e(f"buffer_store_dword v{t3}, v{t4}, s[4:7], s55 offen")
    k.e("s_mov_b64 exec, -1")
    k.e(f"s_branch {sk}")
    k.lab(lV)
    k.e(f"""
    v_lshrrev_b32 v{t3}, 5, v1
    v_lshlrev_b32 v{t3}, 4, v{t3}
    s_lshl_b32 s55, s35, 7
    s_add_u32 s55, s55, {RSO}
    v_add_u32 v{t3}, s55, v{t3}
    """)
    for q in range(4):
        k.e(f"ds_read_b128 v[{big+16+4*q}:{big+16+4*q+3}], v{t3} offset:{q*32}")
    k.e("s_waitcnt lgkmcnt(0)")
    for i in range(16): k.e(f"v_mul_f32 v{big+i}, v{big+i}, v{big+16+i}")
    for i in range(8): k.e(f"v_cvt_pk_bf16_f32 v{big+32+i}, v{big+2*i}, v{big+2*i+1}")
    k.e(f"""
    v_and_b32 v{t3}, 31, v1
    v_cmp_eq_u32 vcc, 0, v{t3}
    v_mov_b32 v{t4}, 0x3f803f80
    s_nop 1
    """)
    for i in range(8): k.e(f"v_cndmask_b32 v{big+32+i}, v{big+32+i}, v{t4}, vcc")
    k.e(f"""
    v_subrev_u32 v{t4}, 16, v{t3}
    v_mov_b32 v{t5}, 16
    v_cndmask_b32 v{t4}, v{t4}, v{t5}, vcc
    v_lshlrev_b32 v{t4}, 4, v{t4}
    v_lshrrev_b32 v{t5}, 5, v1
    v_mul_u32_u24 v{t5}, 272, v{t5}
    v_add_u32 v{t4}, v{t4}, v{t5}
    s_mul_i32 s55, s54, 1088
    s_add_u32 s55, s55, {WS_V}
    s_mov_b32 s58, 0xffff0001
    s_mov_b32 s59, 0xffff0001
    s_mov_b64 exec, s[58:59]
    buffer_store_dwordx4 v[{big+32}:{big+35}], v{t4}, s[4:7], s55 offen
    buffer_store_dwordx4 v[{big+36}:{big+39}], v{t4}, s[4:7], s55 offen offset:544
    s_mov_b64 exec, -1
    """)
    k.lab(sk)
    r2 = [t[8], t[9]]; rq = [t[10], t[11]]
    for tj in range(2):
        k.e(f"v_mul_f32 v{r2[tj]}, v{rs[tj]}, v{rs[tj]}")
        k.e(f"v_mul_f32 v{rq[tj]}, 0x{f2u(QSCALE):08x}, v{rs[tj]}")
    k.e("s_nop 7")
    for ai in range(2):
        for tj in range(2):
            c = acc[ai][tj]
            k.e(f"""
            s_lshl_b32 s54, s29, 2
            s_lshl_b32 s55, s31, 1
            s_add_u32 s54, s54, s55
            s_add_u32 s54, s54, {tj}
            """)
            lq = k.newlabel("qepi"); le = k.newlabel("eend")
            if ai == 1:
                k.e(f"s_cmp_eq_u32 s32, 3\ns_cbranch_scc1 {lq}")
            for i in range(8):
                k.e(f"v_max_f32 v{c+i}, 0, v{c+i}")
                k.e(f"v_mul_f32 v{c+8+i}, v{c+8+i}, v{r2[tj]}")
            for i in range(8):
                k.e(f"v_mul_f32 v{c+i}, v{c+i}, v{c+8+i}")
            for i in range(4):
                k.e(f"v_cvt_pk_bf16_f32 v{c+i}, v{c+2*i}, v{c+2*i+1}")
            k.e(f"""
            s_mul_i32 s54, s54, 112
            s_mul_i32 s55, s30, 7
            s_add_u32 s54, s54, s55
            s_lshl_b32 s55, s32, 1
            s_add_u32 s54, s54, s55
            s_add_u32 s54, s54, {ai}
            s_lshl_b32 s54, s54, 10
            s_add_u32 s54, s54, {WS_H}
            buffer_store_dwordx4 v[{c}:{c+3}], v2, s[4:7], s54 offen
            """)
            if ai == 1:
                k.e(f"s_branch {le}")
                k.lab(lq)
                for i in range(16): k.e(f"v_mul_f32 v{c+i}, v{c+i}, v{rq[tj]}")
                for i in range(8): k.e(f"v_cvt_pk_bf16_f32 v{c+i}, v{c+2*i}, v{c+2*i+1}")
                k.e(f"""
                s_lshl_b32 s54, s54, 5
                s_lshl_b32 s55, s30, 1
                s_add_u32 s54, s54, s55
                s_lshl_b32 s54, s54, 10
                s_add_u32 s54, s54, {WS_Q}
                buffer_store_dwordx4 v[{c}:{c+3}], v2, s[4:7], s54 offen
                buffer_store_dwordx4 v[{c+4}:{c+7}], v2, s[4:7], s54 offen offset:1024
                """)
                k.lab(le)
    if stamps:
        k.e("s_memtime s[80:81]")
        k.e("s_waitcnt vmcnt(0)")
        k.e("s_memtime s[78:79]")
        k.e("s_waitcnt lgkmcnt(0)")
        k.e("s_mov_b32 s16, s4\ns_mov_b32 s17, s5\ns_mov_b32 s18, s6\ns_mov_b32 s19, 0x20000")
        for i in range(1, 9): k.e(f"s_sub_u32 s{84+2*i}, s{84+2*i}, s84")
        k.e("s_sub_u32 s78, s78, s84\ns_sub_u32 s80, s80, s84")
        k.e(f"s_cmp_eq_u32 s2, STAMPWG\ns_cbranch_scc0 {done}")
        k.e(f"s_and_b32 s54, s28, 3\ns_cmp_eq_u32 s54, 0\ns_cbranch_scc0 {done}")
        k.e(f"s_lshl_b32 s54, s28, 4\ns_add_u32 s54, s54, {WS_FLAG + 8192}")
        k.e("v_mov_b32 v3, s54")
        for i in range(8): k.e(f"v_mov_b32 v{8+i}, s{86+2*i}")
        k.e("v_mov_b32 v16, s80\nv_mov_b32 v17, s78\nv_mov_b32 v18, 0\nv_mov_b32 v19, 0")
        k.e("s_mov_b64 exec, 1")
        k.e("buffer_store_dwordx4 v[8:11], v3, s[16:19], 0 offen")
        k.e("buffer_store_dwordx4 v[12:15], v3, s[16:19], 0 offen offset:16")
        k.e("buffer_store_dwordx4 v[16:19], v3, s[16:19], 0 offen offset:32")
        k.e("s_waitcnt vmcnt(0)")
    if rt: rt_end(k, 76, 0, 4, 28, 54, 8, WS_RT, done)
    k.lab(done)
    vg = (vend + 7) // 8 * 8
    return kernel_text(name, k.text(), vg), (name, 256, 512, LDS_TOTAL)

if __name__ == "__main__":
    import sys
    kt, la = proj_kernel(stamps=len(sys.argv) > 2, exp=sys.argv[3] if len(sys.argv) > 3 else "")
    open(sys.argv[1], "w").write(assemble_file([la], [kt]).replace("STAMPWG", "5"))
```

```python
import sys, argparse
from asmlib import *
import proj, main2
ap = argparse.ArgumentParser()
ap.add_argument("out")
ap.add_argument("--U", type=int, default=8); ap.add_argument("--D", type=int, default=4)
ap.add_argument("--stamps", action="store_true")
a = ap.parse_args()
k1, l1 = proj.proj_kernel(stamps=a.stamps)
k2, l2 = main2.main_kernel(U=a.U, D=a.D, stamps=a.stamps)
txt = assemble_file([l1, l2], [k1, k2]).replace("STAMPWG", "5").replace("STAMP_WG", "5")
open(a.out, "w").write(txt)
```

```python
class KB:
    def __init__(self, name):
        self.name = name
        self.l = []
        self.uid = 0
    def e(self, s):
        for ln in s.strip("\n").split("\n"):
            ln = ln.strip()
            if ln:
                self.l.append("    " + ln if not ln.endswith(":") else ln)
    def c(self, s):
        self.l.append("    ; " + s)
    def lab(self, s):
        self.l.append(s + ":")
    def newlabel(self, base):
        self.uid += 1
        return f"L_{self.name}_{base}_{self.uid}"
    def text(self):
        return "\n".join(self.l)

def vr(a, n=1):
    return f"v{a}" if n == 1 else f"v[{a}:{a+n-1}]"
def sr(a, n=1):
    return f"s{a}" if n == 1 else f"s[{a}:{a+n-1}]"

def kernel_text(name, body, vgpr, sgpr=102, accum=None):
    if accum is None:
        accum = (vgpr + 3) // 4 * 4
    head = f""".text
.globl {name}
.p2align 8
.type {name},@function
{name}:
{body}
    s_endpgm
"""
    desc = f""".section .rodata,"a"
.p2align 6
.amdhsa_kernel {name}
  .amdhsa_next_free_vgpr {vgpr}
  .amdhsa_next_free_sgpr {sgpr}
  .amdhsa_accum_offset {accum}
  .amdhsa_group_segment_fixed_size 0
  .amdhsa_kernarg_size 96
  .amdhsa_user_sgpr_count 2
  .amdhsa_user_sgpr_kernarg_segment_ptr 1
  .amdhsa_system_sgpr_workgroup_id_x 1
  .amdhsa_float_denorm_mode_32 3
  .amdhsa_float_denorm_mode_16_64 3
.end_amdhsa_kernel
"""
    return head, desc

HEADER = """; Kernarg layout for this problem (96 bytes, ptrs only, base s[0:1]):
"""

def assemble_file(launches, kernels):
    out = [HEADER.rstrip("\n")]
    for (n, g, b, lds) in launches:
        out.append(f"; @launch kernel={n} grid=({g},1,1) block=({b},1,1) lds={lds}")
    out.append('.amdgcn_target "amdgcn-amd-amdhsa--gfx950"')
    for h, d in kernels:
        out.append(h)
    for h, d in kernels:
        out.append(d)
    return "\n".join(out) + "\n"

def rt_begin(k, sreg):
    k.e(f"s_memrealtime s[{sreg}:{sreg+1}]")
def rt_end(k, sreg, kidx, ws_srd, wave_sgpr, tmp_s, tmp_v, ws_rt, skip_label):
    k.e(f"s_waitcnt vmcnt(0)")
    k.e(f"s_memrealtime s[{sreg+2}:{sreg+3}]")
    k.e(f"s_waitcnt lgkmcnt(0)")
    k.e(f"s_lshl_b32 s{tmp_s}, s2, 7")
    k.e(f"s_lshl_b32 s{tmp_s+1}, s{wave_sgpr}, 3")
    k.e(f"s_add_u32 s{tmp_s}, s{tmp_s}, s{tmp_s+1}")
    k.e(f"s_add_u32 s{tmp_s}, s{tmp_s}, {ws_rt + kidx * 65536}")
    k.e(f"v_mov_b32 v{tmp_v}, s{sreg}")
    k.e(f"v_mov_b32 v{tmp_v+1}, s{sreg+2}")
    k.e(f"v_mov_b32 v{tmp_v+2}, 0")
    k.e(f"s_mov_b64 exec, 1")
    k.e(f"buffer_store_dwordx2 v[{tmp_v}:{tmp_v+1}], v{tmp_v+2}, s[{ws_srd}:{ws_srd+3}], s{tmp_s} offen")
    k.e(f"s_waitcnt vmcnt(0)")
```

```python
WS_K    = 0x200000
WS_V    = 0x210000
KV_BYTES = 65536 + 64 * 1088
WS_KMAX = 0x228000
WS_STAT = 0x230000
WS_CS   = 0x238000
WS_H    = 0x300000
WS_O    = 0xA00000
WS_WD   = 0xC00000
WS_FLAG = 0xF00000
WS_EPOCH = WS_FLAG
WS_FLAG1 = WS_FLAG + 0x1000
WS_FLAG2 = WS_FLAG + 0x2000
WS_DBG  = WS_FLAG + 0x8000
WS_RT = 0xF10000
WS_Q    = 0x000000
WS_SIZE = 0x10000000
QSCALE = 0.25 * 1.4426950408889634
MB_THRESH = 48.0
```

```python
from asmlib import *
from layout import *
from attn import f2u, wave_allreduce_max, AttnRegs, maxpass
from proj import allreduce_add

SLOT = 49152
XOFF, GOFF, UOFF = 0, 16384, 32768
SA, SB, SC = 0, SLOT, 2 * SLOT
SCR = 3 * SLOT
LDS_TOTAL = 163840
WKV = SC; XN = SC + 32768
KVP = SCR; CSP = SCR + 4096; WDS = SCR + 6144; QX = SCR; CNT = SCR + 16320
CHUNK = 33792
CB = [101376, 0, 33792, 67584]
RED = 0

class Ctx: pass

def bf16r(k, d, s):
    k.e(f"v_cvt_pk_bf16_f32 v{d}, v{s}, v{s}")
    k.e(f"v_and_b32 v{d}, 0xffff0000, v{d}")

DEF_MARKS = "c_pre,c_ln,c_e2,c_main,c_T,a_end,a_out;p_st0,p_e2,p_b6,p_T,g_f2,g_ffn,g_o,g_end"
def mega_kernel(name="mega_kernel", stamps=False, rt=False, U=16, D=4, dbgq=False, exp="", stamp_wg=5, marks=DEF_MARKS):
    k = KB(name)
    markidx = {}
    for grp in marks.split(";"):
        for i, n in enumerate(grp.split(",")): markidx[n] = i + 1
    done = k.newlabel("done")
    def stamp(i):
        if stamps: k.e(f"s_memtime s[{84+2*i}:{85+2*i}]")
    def mk(n):
        if n in markidx: stamp(markidx[n])
    def stamp_out(nst):
        if not stamps: return
        sk = k.newlabel("nost")
        k.e("s_waitcnt vmcnt(0) lgkmcnt(0)")
        for i in range(1, nst): k.e(f"s_sub_u32 s{84+2*i}, s{84+2*i}, s84")
        k.e(f"s_cmp_eq_u32 s2, {stamp_wg}\ns_cbranch_scc0 {sk}")
        k.e(f"s_lshl_b32 s56, s20, 6\ns_add_u32 s56, s56, {WS_DBG}")
        k.e("v_mov_b32 v3, 0")
        k.e("s_mov_b64 exec, 1")
        for i in range(1, nst):
            k.e(f"v_mov_b32 v4, s{84+2*i}")
            k.e(f"buffer_store_dword v4, v3, s[4:7], s56 offen offset:{4*(i-1)}")
            k.e("s_nop 1")
        k.e("s_mov_b64 exec, -1")
        k.e("s_waitcnt vmcnt(0)")
        k.lab(sk)
    k.e(f"""
    s_cmp_ge_u32 s2, 256
    s_cbranch_scc1 {done}
    s_load_dwordx16 s[36:51], s[0:1], 0
    s_load_dwordx2 s[52:53], s[0:1], 64
    s_load_dwordx2 s[54:55], s[0:1], 72
    s_load_dwordx2 s[4:5], s[0:1], 88
    """)
    stamp(0)
    if rt: rt_begin(k, 76)
    k.e(f"""
    v_lshrrev_b32 v3, 6, v0
    v_and_b32 v1, 63, v0
    v_readfirstlane_b32 s20, v3
    v_lshlrev_b32 v2, 4, v1
    s_and_b32 s56, s2, 7
    s_lshr_b32 s57, s2, 3
    s_and_b32 s21, s56, 1
    s_lshl_b32 s21, s21, 3
    s_and_b32 s58, s57, 7
    s_add_u32 s21, s21, s58
    s_lshr_b32 s22, s56, 1
    s_lshl_b32 s22, s22, 2
    s_lshr_b32 s58, s57, 3
    s_add_u32 s22, s22, s58
    s_lshl_b32 s24, s21, 1
    s_lshr_b32 s58, s22, 3
    s_add_u32 s24, s24, s58
    s_and_b32 s25, s22, 7
    s_lshl_b32 s26, s21, 4
    s_add_u32 s26, s26, s22
    """)
    prod = k.newlabel("producer")
    k.e(f"s_cmp_ge_u32 s20, 4\ns_cbranch_scc1 {prod}")

    def common_after_kernarg():
        k.e(f"""
        s_waitcnt lgkmcnt(0)
        s_mov_b32 s6, {WS_SIZE}
        s_mov_b32 s7, 0x20000
        s_mov_b32 s8, s36
        s_mov_b32 s9, s37
        s_mov_b32 s10, {2048*1024}
        s_mov_b32 s11, 0x20000
        s_add_u32 s56, s4, {WS_EPOCH}
        s_addc_u32 s57, s5, 0
        s_load_dword s23, s[56:57], 0
        """)

    b = 8
    def al(n, align=2):
        nonlocal b
        b = (b + align - 1) // align * align
        r = b; b += n
        return r
    acc = [[al(16) for _ in range(2)] for _ in range(4)]
    Bf = [[al(4) for _ in range(2)] for _ in range(2)]
    Af = [[al(4) for _ in range(4)] for _ in range(2)]
    vB = [al(1, 1) for _ in range(4)]
    vA = [al(1, 1) for _ in range(4)]
    st2 = al(2)
    cs4 = [al(4) for _ in range(4)]
    cs = [c_ for c_ in cs4]
    km4 = al(4)
    nm = [al(1, 1) for _ in range(2)]
    rs = [al(1, 1) for _ in range(2)]
    t = [al(1, 1) for _ in range(12)]
    XA = [al(4) for _ in range(4)]
    XB = [al(4) for _ in range(2)]
    cend = b
    e = 8
    tt0, tt1, tt2, tt3, tt4, tt5 = t[0:6]
    k.e("s_and_b32 s28, s20, 1\ns_lshr_b32 s29, s20, 1")
    vKVa = e; xr = [e + 4, e + 8]; csr = e + 12
    wdv = e + 28
    k.e(f"""
    v_lshrrev_b32 v{tt0}, 2, v1
    s_lshl_b32 s56, s20, 7
    v_add_u32 v{tt0}, s56, v{tt0}
    v_lshlrev_b32 v{tt0}, 5, v{tt0}
    v_and_b32 v{tt1}, 1, v1
    v_lshlrev_b32 v{tt1}, 4, v{tt1}
    v_add_u32 v{tt0}, v{tt0}, v{tt1}
    v_and_b32 v{tt1}, 2, v1
    v_cmp_eq_u32 vcc, 0, v{tt1}
    v_lshrrev_b32 v{wdv}, 2, v1
    v_lshlrev_b32 v{wdv}, 10, v{wdv}
    v_and_b32 v{tt5}, 3, v1
    v_lshlrev_b32 v{tt4}, 4, v{tt5}
    v_add_u32 v{wdv}, v{wdv}, v{tt4}
    """)
    common_after_kernarg()
    mk('c_karg')
    k.e(f"""
    v_mov_b32 v{tt2}, s42
    v_mov_b32 v{tt3}, s40
    v_cndmask_b32 v{tt2}, v{tt2}, v{tt3}, vcc
    v_mov_b32 v{tt3}, s43
    v_mov_b32 v{tt4}, s41
    v_cndmask_b32 v{tt3}, v{tt3}, v{tt4}, vcc
    v_add_co_u32 v{vKVa}, vcc, v{tt0}, v{tt2}
    v_addc_co_u32 v{vKVa+1}, vcc, 0, v{tt3}, vcc
    s_lshl_b32 s56, s21, 7
    s_lshl_b32 s57, s22, 3
    s_add_u32 s56, s56, s57
    s_lshl_b32 s57, s20, 1
    s_add_u32 s30, s56, s57
    s_lshl_b32 s56, s30, 10
    s_add_u32 s57, s56, 1024
    buffer_load_dwordx4 v[{xr[0]}:{xr[0]+3}], v2, s[8:11], s56 offen
    buffer_load_dwordx4 v[{xr[1]}:{xr[1]+3}], v2, s[8:11], s57 offen
    s_lshl_b32 s31, s20, 13
    """)
    for i in range(8):
        k.e(f"s_add_u32 m0, s31, {WKV + i*1024}")
        k.e("s_nop 0")
        k.e(f"global_load_lds_dwordx4 v[{vKVa}:{vKVa+1}], off")
        if i < 7:
            k.e(f"v_add_co_u32 v{vKVa}, vcc, 512, v{vKVa}")
            k.e(f"v_addc_co_u32 v{vKVa+1}, vcc, 0, v{vKVa+1}, vcc")
    k.e("""
    s_lshl_b32 s56, s21, 2
    s_add_u32 s56, s56, s20
    s_lshl_b32 s56, s56, 5
    s_lshl_b32 s57, s22, 1
    s_add_u32 s56, s56, s57
    s_lshl_b32 s32, s56, 10
    """)
    k.e(f"""
    v_and_b32 v{tt0}, 31, v1
    v_lshrrev_b32 v{tt1}, 5, v1
    v_lshrrev_b32 v{tt2}, 1, v{tt0}
    v_and_b32 v{tt2}, 7, v{tt2}
    v_xor_b32 v{tt2}, v{tt2}, v{tt1}
    s_lshl_b32 s56, s28, 6
    v_add_u32 v{tt0}, s56, v{tt0}
    v_lshlrev_b32 v{tt0}, 7, v{tt0}
    """)
    for q in range(4):
        k.e(f"v_xor_b32 v{tt3}, {2*q}, v{tt2}")
        k.e(f"v_lshlrev_b32 v{tt3}, 4, v{tt3}")
        k.e(f"v_add_u32 v{vB[q]}, v{tt0}, v{tt3}")
    k.e(f"""
    v_lshrrev_b32 v{tt0}, 4, v1
    v_and_b32 v{tt1}, 1, v{tt0}
    v_lshrrev_b32 v{tt0}, 1, v{tt0}
    v_and_b32 v{tt2}, 15, v1
    v_lshrrev_b32 v{tt3}, 2, v{tt2}
    v_and_b32 v{tt2}, 3, v{tt2}
    v_lshlrev_b32 v{tt4}, 3, v{tt0}
    v_add_u32 v{tt4}, v{tt4}, v{tt3}
    """)
    vKVr = e + 36
    vWDr = e + 37
    k.e(f"""
    v_lshlrev_b32 v{tt5}, 6, v{tt4}
    v_lshlrev_b32 v{t[6]}, 5, v{tt1}
    v_add_u32 v{tt5}, v{tt5}, v{t[6]}
    v_lshlrev_b32 v{t[7]}, 3, v{tt2}
    v_add_u32 v{tt5}, v{tt5}, v{t[7]}
    s_add_u32 s56, s31, {WKV}
    v_add_u32 v{vKVr}, s56, v{tt5}
    v_lshlrev_b32 v{tt5}, 2, v{tt0}
    v_add_u32 v{tt5}, v{tt5}, v{tt3}
    v_lshlrev_b32 v{tt5}, 6, v{tt5}
    v_add_u32 v{tt5}, v{tt5}, v{t[6]}
    v_add_u32 v{vWDr}, v{tt5}, v{t[7]}
    v_lshlrev_b32 v{tt4}, 8, v{tt4}
    v_lshlrev_b32 v{tt5}, 14, v{tt1}
    v_add_u32 v{tt4}, v{tt4}, v{tt5}
    v_add_u32 v{tt4}, v{tt4}, v{t[7]}
    v_lshlrev_b32 v{tt3}, 1, v{tt3}
    v_add_u32 v{tt3}, v{tt3}, v{tt1}
    """)
    for ai in range(4):
        k.e(f"""
        s_lshl_b32 s56, s29, 2
        s_add_u32 s56, s56, {ai}
        v_xor_b32 v{tt5}, s56, v{tt3}
        v_lshlrev_b32 v{tt5}, 5, v{tt5}
        v_add_u32 v{tt5}, v{tt5}, v{tt4}
        v_add_u32 v{vA[ai]}, {GOFF}, v{tt5}
        """)
    mk('c_pre')
    k.e(f"s_waitcnt vmcnt(8)")
    mk('c_x')
    u = [e + 40 + i for i in range(48)]
    X = [u[0:8], u[8:16]]
    S = [u[16], u[18]]; Qq = [u[17], u[19]]
    for j in range(2):
        for i in range(4):
            k.e(f"v_lshlrev_b32 v{X[j][2*i]}, 16, v{xr[j]+i}")
            k.e(f"v_and_b32 v{X[j][2*i+1]}, 0xffff0000, v{xr[j]+i}")
    for j in range(2):
        k.e(f"v_add_f32 v{S[j]}, v{X[j][0]}, v{X[j][1]}")
        k.e(f"v_mul_f32 v{Qq[j]}, v{X[j][0]}, v{X[j][0]}")
        k.e(f"v_fma_f32 v{Qq[j]}, v{X[j][1]}, v{X[j][1]}, v{Qq[j]}")
    for i in range(2, 8):
        for j in range(2):
            k.e(f"v_add_f32 v{S[j]}, v{S[j]}, v{X[j][i]}")
            k.e(f"v_fma_f32 v{Qq[j]}, v{X[j][i]}, v{X[j][i]}, v{Qq[j]}")
    allreduce_add(k, [S[0], Qq[0], S[1], Qq[1]], u[20:24],
                  ["dpp:quad_perm:[1,0,3,2]", "dpp:quad_perm:[2,3,0,1]", "dpp:row_half_mirror", "dpp:row_mirror", "p16", "p32"])
    SO = [u[24], u[26]]
    for j in range(2):
        a_, r_ = SO[j], SO[j] + 1
        k.e(f"""
        v_mul_f32 v{S[j]}, 0x{f2u(1/512):08x}, v{S[j]}
        v_mul_f32 v{Qq[j]}, 0x{f2u(1/512):08x}, v{Qq[j]}
        v_fma_f32 v{Qq[j]}, -v{S[j]}, v{S[j]}, v{Qq[j]}
        v_max_f32 v{Qq[j]}, 0, v{Qq[j]}
        v_cvt_pk_bf16_f32 v{r_}, v{S[j]}, v{Qq[j]}
        v_lshlrev_b32 v{a_}, 16, v{r_}
        v_and_b32 v{r_}, 0xffff0000, v{r_}
        v_add_f32 v{r_}, 0x{f2u(1e-5):08x}, v{r_}
        v_cvt_pk_bf16_f32 v{r_}, v{r_}, v{r_}
        v_and_b32 v{r_}, 0xffff0000, v{r_}
        v_sqrt_f32 v{r_}, v{r_}
        v_xor_b32 v{a_}, 0x80000000, v{a_}
        v_cvt_pk_bf16_f32 v{r_}, v{r_}, v{r_}
        v_and_b32 v{r_}, 0xffff0000, v{r_}
        v_rcp_f32 v{r_}, v{r_}
        """)
    k.e(f"""
    s_lshl_b32 s56, s30, 3
    s_add_u32 s56, s56, {WS_STAT}
    v_mov_b32 v{u[28]}, 0
    s_mov_b64 exec, 1
    buffer_store_dwordx4 v[{SO[0]}:{SO[0]+3}], v{u[28]}, s[4:7], s56 offen sc1
    s_mov_b64 exec, -1
    """)
    for j in range(2):
        for i in range(8): k.e(f"v_add_f32 v{X[j][i]}, v{X[j][i]}, v{SO[j]}")
        for i in range(4): k.e(f"v_cvt_pk_bf16_f32 v{u[32+i]}, v{X[j][2*i]}, v{X[j][2*i+1]}")
        for i in range(4):
            k.e(f"v_lshlrev_b32 v{X[j][2*i]}, 16, v{u[32+i]}")
            k.e(f"v_and_b32 v{X[j][2*i+1]}, 0xffff0000, v{u[32+i]}")
        for i in range(8): k.e(f"v_mul_f32 v{X[j][i]}, v{X[j][i]}, v{SO[j]+1}")
        o = u[36 + 4*j]
        for i in range(4): k.e(f"v_cvt_pk_bf16_f32 v{o+i}, v{X[j][2*i]}, v{X[j][2*i+1]}")
    k.e(f"""
    v_lshlrev_b32 v{u[28]}, 7, v1
    s_lshl_b32 s56, s20, 5
    s_add_u32 s56, s56, {XN}
    v_add_u32 v{u[28]}, s56, v{u[28]}
    ds_write_b128 v{u[28]}, v[{u[36]}:{u[39]}]
    ds_write_b128 v{u[28]}, v[{u[40]}:{u[43]}] offset:16
    """)
    k.e(f"s_waitcnt vmcnt(1)")
    sk = k.newlabel("cz")
    k.e(f"s_cmp_lg_u32 s20, 0\ns_cbranch_scc1 {sk}")
    k.e(f"v_lshlrev_b32 v{u[4]}, 2, v1\nv_add_u32 v{u[4]}, {CNT}, v{u[4]}\nv_mov_b32 v{u[5]}, 0")
    k.e("s_mov_b64 exec, 0xffff")
    k.e(f"ds_write_b32 v{u[4]}, v{u[5]}")
    k.e("s_mov_b64 exec, -1")
    k.lab(sk)
    mk('c_ln')
    k.e("s_waitcnt lgkmcnt(0)")
    k.e("s_barrier")
    mk('c_e1')
    accK, accV = u[0], u[16]
    xf = [e + 96, e + 100]; wf = [e + 104, e + 108]
    vXN = e + 112
    k.e(f"""
    v_and_b32 v{vXN}, 7, v1
    v_lshlrev_b32 v{vXN}, 4, v{vXN}
    v_lshrrev_b32 v{tt0}, 5, v1
    v_lshlrev_b32 v{tt0}, 7, v{tt0}
    v_add_u32 v{vXN}, v{vXN}, v{tt0}
    s_lshl_b32 s56, s20, 11
    s_add_u32 s56, s56, {XN}
    v_add_u32 v{vXN}, s56, v{vXN}
    """)
    def kvrd(i):
        bq = i & 1
        k.e(f"ds_read_b128 v[{xf[bq]}:{xf[bq]+3}], v{vXN} offset:{i*256}")
        k.e(f"ds_read_b64_tr_b16 v[{wf[bq]}:{wf[bq]+1}], v{vKVr} offset:{i*1024}")
        k.e(f"ds_read_b64_tr_b16 v[{wf[bq]+2}:{wf[bq]+3}], v{vKVr} offset:{i*1024+256}")
    kvrd(0)
    for i in range(8):
        if i < 7: kvrd(i + 1)
        k.e(f"s_waitcnt lgkmcnt({3 if i < 7 else 0})")
        bq = i & 1
        cK = "0" if i == 0 else f"v[{accK}:{accK+15}]"
        cV = "0" if i == 0 else f"v[{accV}:{accV+15}]"
        k.e(f"v_mfma_f32_32x32x16_bf16 v[{accK}:{accK+15}], v[{wf[bq]}:{wf[bq]+3}], v[{xf[bq]}:{xf[bq]+3}], {cK}")
        k.e(f"v_mfma_f32_32x32x16_bf16 v[{accV}:{accV+15}], v[{xf[bq]}:{xf[bq]+3}], v[{wf[bq]}:{wf[bq]+3}], {cV}")
    k.e(f"""
    v_and_b32 v{tt0}, 7, v1
    v_lshrrev_b32 v{tt1}, 5, v1
    v_lshlrev_b32 v{tt2}, 3, v{tt1}
    v_add_u32 v{tt0}, v{tt0}, v{tt2}
    v_lshlrev_b32 v{tt0}, 5, v{tt0}
    v_and_b32 v{tt2}, 15, v1
    v_lshlrev_b32 v{tt3}, 4, v{tt1}
    v_add_u32 v{tt2}, v{tt2}, v{tt3}
    v_lshlrev_b32 v{tt2}, 4, v{tt2}
    s_lshl_b32 s56, s20, 10
    s_add_u32 s56, s56, {KVP}
    v_add_u32 v{tt0}, s56, v{tt0}
    v_add_u32 v{tt2}, s56, v{tt2}
    s_mov_b32 s58, 0xff
    s_mov_b32 s59, 0xff
    s_mov_b32 s60, 0xffff0000
    s_mov_b32 s61, 0xffff0000
    s_nop 15
    s_mov_b64 exec, s[58:59]
    ds_write_b128 v{tt0}, v[{accK}:{accK+3}]
    ds_write_b128 v{tt0}, v[{accK+4}:{accK+7}] offset:16
    s_mov_b64 exec, s[60:61]
    ds_write_b128 v{tt2}, v[{accV}:{accV+3}] offset:512
    s_mov_b64 exec, -1
    """)
    k.e("s_waitcnt lgkmcnt(0)")
    k.e("s_barrier")
    mk('c_e2')
    addr_regs = vB + vA
    def read_list(g):
        st, q = divmod(g, 4)
        imm = SLOT if st % 3 == 1 else 0
        bu = g & 1
        out = []
        for tj in range(2):
            out.append(f"ds_read_b128 v[{Bf[bu][tj]}:{Bf[bu][tj]+3}], v{vB[q]} offset:{imm + tj*4096}")
        for ai in range(4):
            for jj in range(2):
                r = Af[bu][ai] + 2 * jj
                out.append(f"ds_read_b64_tr_b16 v[{r}:{r+1}], v{vA[ai]} offset:{imm + q*4096 + jj*1024}")
        return out
    def kstep(gc, rd, extras=()):
        ms = []
        if gc is not None:
            bu = gc & 1
            for ai in range(4):
                for tj in range(2):
                    c = acc[ai][tj]; A = Af[bu][ai]; B = Bf[bu][tj]
                    cin = "0" if gc == 0 else f"v[{c}:{c+15}]"
                    ms.append(f"v_mfma_f32_32x32x16_bf16 v[{c}:{c+15}], v[{A}:{A+3}], v[{B}:{B+3}], {cin}")
        if 'nomfma' in exp: ms = []
        slots = [rd[0:2], rd[2:4], rd[4:6], rd[6:8], rd[8:10], [], [], []]
        extras = list(extras)
        for i in range(8):
            if i < len(ms): k.e(ms[i])
            for r in slots[i]: k.e(r)
            if i >= 5 and extras: extras.pop(0)()
        for x in extras: x()
    def flag1_store():
        sk = k.newlabel("nof1")
        k.e(f"s_cmp_lg_u32 s20, 0\ns_cbranch_scc1 {sk}")
        k.e(f"""
        s_add_u32 s56, s23, 1
        v_mov_b32 v{t[6]}, s56
        v_mov_b32 v{t[7]}, 0
        s_lshl_b32 s56, s26, 2
        s_add_u32 s56, s56, {WS_FLAG1}
        s_mov_b64 exec, 1
        buffer_store_dword v{t[6]}, v{t[7]}, s[4:7], s56 offen sc1
        s_mov_b64 exec, -1
        """)
        k.lab(sk)
    def late_loads():
        k.e(f"""
        s_lshl_b32 s56, s21, 7
        s_lshl_b32 s57, s28, 6
        s_add_u32 s56, s56, s57
        s_lshl_b32 s56, s56, 3
        s_add_u32 s56, s56, {WS_STAT}
        v_lshlrev_b32 v{t[6]}, 3, v1
        buffer_load_dwordx2 v[{st2}:{st2+1}], v{t[6]}, s[4:7], s56 offen sc1
        v_and_b32 v{t[6]}, 15, v1
        v_and_b32 v{t[7]}, 16, v1
        v_mul_u32_u24 v{t[7]}, 112, v{t[7]}
        v_add_u32 v{t[6]}, v{t[6]}, v{t[7]}
        v_lshlrev_b32 v{t[6]}, 4, v{t[6]}
        v_and_b32 v{t[7]}, 31, v1
        v_lshlrev_b32 v{t[7]}, 4, v{t[7]}
        s_mul_i32 s56, s22, 112
        s_lshl_b32 s57, s29, 6
        s_add_u32 s56, s56, s57
        s_lshl_b32 s56, s56, 4
        s_add_u32 s56, s56, {WS_CS}
        s_lshl_b32 s57, s22, 5
        s_add_u32 s57, s57, 3584
        s_lshl_b32 s57, s57, 4
        s_add_u32 s57, s57, {WS_CS}
        """)
        for ai in range(3):
            k.e(f"buffer_load_dwordx4 v[{cs4[ai]}:{cs4[ai]+3}], v{t[6]}, s[4:7], s56 offen offset:{ai*256} sc1")
        k.e(f"""
        s_add_u32 s56, s56, 768
        s_cmp_eq_u32 s29, 1
        s_cselect_b64 vcc, -1, 0
        s_cselect_b32 s56, s57, s56
        v_cndmask_b32 v{t[6]}, v{t[6]}, v{t[7]}, vcc
        buffer_load_dwordx4 v[{cs4[3]}:{cs4[3]+3}], v{t[6]}, s[4:7], s56 offen sc1
        """)
        k.e(f"s_mov_b32 s56, {WS_KMAX}")
        k.e(f"buffer_load_dwordx4 v[{km4}:{km4+3}], v2, s[4:7], s56 offen sc1")
    cur_add = 0
    for g in range(32):
        st, q = divmod(g, 4)
        extras = []
        if q == 0 and st > 0:
            if st == 1: k.e("s_waitcnt vmcnt(0) lgkmcnt(0)")
            else: k.e("s_waitcnt lgkmcnt(0)")
            k.e("s_barrier")
        if q == 0:
            want = 2 * SLOT if st % 3 == 2 else 0
            if want != cur_add:
                d = want - cur_add
                for r in addr_regs:
                    if d > 0: k.e(f"v_add_u32 v{r}, {d}, v{r}")
                    else: k.e(f"v_subrev_u32 v{r}, {-d}, v{r}")
                cur_add = want
        if st == 3 and q == 0: extras.append(flag1_store)
        if st == 6 and q == 1: extras.append(late_loads)
        kstep(g - 1 if g > 0 else None, read_list(g) if 'noreads' not in exp else [], extras)
        if q != 3: k.e("s_waitcnt lgkmcnt(0)")
    k.e("s_waitcnt lgkmcnt(0)")
    kstep(31, [])
    mk('c_main')
    t0, t1, t2, t3 = t[0:4]
    k.e("s_waitcnt vmcnt(0)")
    k.e(f"""
    v_mov_b32 v{nm[0]}, v{st2}
    v_mov_b32 v{nm[1]}, v{st2}
    v_mov_b32 v{rs[0]}, v{st2+1}
    v_mov_b32 v{rs[1]}, v{st2+1}
    v_cmp_gt_u32 vcc, 32, v1
    v_permlane32_swap_b32 v{nm[0]}, v{nm[1]}
    v_permlane32_swap_b32 v{rs[0]}, v{rs[1]}
    """)
    for ai in range(4):
        k.e(f"v_add_f32 v{cs[ai]}, v{cs[ai]}, v{cs[ai]+1}")
        k.e(f"v_add_f32 v{cs[ai]+2}, v{cs[ai]+2}, v{cs[ai]+3}")
        k.e(f"v_add_f32 v{cs[ai]}, v{cs[ai]}, v{cs[ai]+2}")
        k.e(f"v_cndmask_b32 v{cs[ai]}, 0, v{cs[ai]}, vcc")
    for tj in range(2):
        k.e(f"v_lshrrev_b32 v{t2}, 16, v{nm[tj]}")
        k.e(f"v_or_b32 v{XB[tj]}, v{t2}, v{nm[tj]}")
        for i in range(1, 4): k.e(f"v_mov_b32 v{XB[tj]+i}, 0")
    for ai in range(4):
        k.e(f"v_cvt_pk_bf16_f32 v{t2}, v{cs[ai]}, v{cs[ai]}")
        k.e(f"v_lshlrev_b32 v{t2}, 16, v{t2}")
        k.e(f"v_sub_f32 v{t2}, v{cs[ai]}, v{t2}")
        k.e(f"v_cvt_pk_bf16_f32 v{XA[ai]}, v{cs[ai]}, v{t2}")
        for i in range(1, 4): k.e(f"v_mov_b32 v{XA[ai]+i}, 0")
    k.e("s_nop 1")
    for ai in range(4):
        for tj in range(2):
            c = acc[ai][tj]
            k.e(f"v_mfma_f32_32x32x16_bf16 v[{c}:{c+15}], v[{XA[ai]}:{XA[ai]+3}], v[{XB[tj]}:{XB[tj]+3}], v[{c}:{c+15}]")
    r2 = [t[8], t[9]]; rq = [t[10], t[11]]
    for tj in range(2):
        k.e(f"v_mul_f32 v{r2[tj]}, v{rs[tj]}, v{rs[tj]}")
        k.e(f"v_mul_f32 v{rq[tj]}, 0x{f2u(QSCALE):08x}, v{rs[tj]}")
    k.e(f"""
    s_lshl_b32 s56, s21, 2
    s_lshl_b32 s57, s28, 1
    s_add_u32 s56, s56, s57
    s_mul_i32 s56, s56, 112
    s_mul_i32 s57, s22, 7
    s_add_u32 s56, s56, s57
    s_lshl_b32 s57, s29, 2
    s_add_u32 s56, s56, s57
    s_lshl_b32 s56, s56, 10
    s_add_u32 s33, s56, {WS_H}
    s_add_u32 s34, s33, {112*1024}
    """)
    for ai in range(4):
        for tj in range(2):
            c = acc[ai][tj]
            lq = k.newlabel("qepi"); le = k.newlabel("eend")
            if ai == 0 and tj == 0: k.e("s_nop 7")
            if ai == 3:
                k.e(f"s_cmp_eq_u32 s29, 1\ns_cbranch_scc1 {lq}")
            for i in range(8):
                k.e(f"v_max_f32 v{c+i}, 0, v{c+i}")
                k.e(f"v_mul_f32 v{c+8+i}, v{c+8+i}, v{r2[tj]}")
            for i in range(8):
                k.e(f"v_mul_f32 v{c+i}, v{c+i}, v{c+8+i}")
            for i in range(4):
                k.e(f"v_cvt_pk_bf16_f32 v{c+i}, v{c+2*i}, v{c+2*i+1}")
            k.e(f"buffer_store_dwordx4 v[{c}:{c+3}], v2, s[4:7], s{33+tj} offen offset:{ai*1024} sc1")
            if ai == 3:
                k.e(f"s_branch {le}")
                k.lab(lq)
                for i in range(16): k.e(f"v_mul_f32 v{c+i}, v{c+i}, v{rq[tj]}")
                for i in range(8): k.e(f"v_cvt_pk_bf16_f32 v{c+i}, v{c+2*i}, v{c+2*i+1}")
                k.e(f"""
                s_lshl_b32 s56, s28, 12
                s_add_u32 s56, s56, {QX + tj*2048}
                v_add_u32 v{t0}, s56, v2
                ds_write_b128 v{t0}, v[{c}:{c+3}]
                ds_write_b128 v{t0}, v[{c+4}:{c+7}] offset:1024
                """)
                if dbgq:
                    k.e(f"""
                    s_lshl_b32 s56, s21, 2
                    s_lshl_b32 s57, s28, 1
                    s_add_u32 s56, s56, s57
                    s_add_u32 s56, s56, {tj}
                    s_lshl_b32 s56, s56, 5
                    s_lshl_b32 s57, s22, 1
                    s_add_u32 s56, s56, s57
                    s_lshl_b32 s56, s56, 10
                    s_add_u32 s56, s56, {WS_Q}
                    buffer_store_dwordx4 v[{c}:{c+3}], v2, s[4:7], s56 offen
                    buffer_store_dwordx4 v[{c+4}:{c+7}], v2, s[4:7], s56 offen offset:1024
                    """)
                k.lab(le)
    R = AttnRegs(2, 8)
    KM = 240
    k.e(f"v_max3_f32 v{KM}, v{km4}, v{km4+1}, v{km4+2}")
    k.e(f"v_max_f32 v{KM}, v{KM}, v{km4+3}")
    wave_allreduce_max(k, KM, KM + 1)
    k.e("s_waitcnt lgkmcnt(0)")
    k.e("s_barrier")
    mk('c_T')
    ctx = Ctx()
    ctx.mk, ctx.marks = mk, markidx
    ctx.k, ctx.R, ctx.KM, ctx.stamp, ctx.stamp_out, ctx.U, ctx.D, ctx.rt, ctx.done, ctx.exp = k, R, KM, stamp, stamp_out, U, D, rt, done, exp
    a_role(ctx)
    k.lab(prod)
    gend = g_role(ctx, common_after_kernarg)
    k.lab(done)
    vg = 256
    return kernel_text(name, k.text(), vg), (name, 256, 512, LDS_TOTAL)

def segment(k, S, P, qk, pv, reads, wait, extra=None):
    E = [f"v_exp_f32 v{S+i}, v{S+i}" for i in range(16)]
    C = [f"v_cvt_pk_bf16_f32 v{P+i}, v{S+2*i}, v{S+2*i+1}" for i in range(8)]
    dS, K_, Q_, C_ = qk
    O_, V_, Ps = pv
    mqk = f"v_mfma_f32_32x32x16_bf16 v[{dS}:{dS+15}], v[{K_}:{K_+3}], v[{Q_}:{Q_+3}], v[{C_}:{C_+15}]"
    m0 = f"v_mfma_f32_32x32x16_bf16 v[{O_}:{O_+15}], v[{V_}:{V_+3}], v[{Ps}:{Ps+3}], v[{O_}:{O_+15}]"
    m1 = f"v_mfma_f32_32x32x16_bf16 v[{O_}:{O_+15}], v[{V_+4}:{V_+7}], v[{Ps+4}:{Ps+7}], v[{O_}:{O_+15}]"
    seq = []
    if wait: seq.append(wait)
    seq.append(mqk)
    seq += reads
    seq += E[0:4]
    seq.append(m0)
    seq += [E[4], E[5], C[0], E[6], E[7], C[1]]
    seq.append(m1)
    seq += [E[8], E[9], C[2], E[10], E[11], C[3], E[12], E[13], C[4], E[14], E[15], C[5], C[6], C[7]]
    for s in seq: k.e(s)
    if extra: extra()

def lds_poll(k, vaddr, vtmp, stmp, target_sgpr_or_imm, offset, lim_sgpr):
    lp = k.newlabel("lpoll"); ok = k.newlabel("lok")
    k.e(f"s_mov_b32 s{lim_sgpr}, 2000000")
    k.lab(lp)
    k.e(f"ds_read_b32 v{vtmp}, v{vaddr} offset:{offset}")
    k.e("s_waitcnt lgkmcnt(0)")
    k.e(f"v_readfirstlane_b32 s{stmp}, v{vtmp}")
    k.e(f"s_sub_u32 s{lim_sgpr}, s{lim_sgpr}, 1")
    k.e(f"s_cmp_ge_u32 s{stmp}, {target_sgpr_or_imm}")
    k.e(f"s_cbranch_scc1 {ok}")
    k.e("s_sleep 1")
    k.e(f"s_cmp_lg_u32 s{lim_sgpr}, 0")
    k.e(f"s_cbranch_scc1 {lp}")
    k.lab(ok)

def a_role(ctx):
    k, R, KM, stamp, mk = ctx.k, ctx.R, ctx.KM, ctx.stamp, ctx.mk
    NQ = 2
    if 'aprio' in ctx.exp: k.e("s_setprio 3")
    k.e(f"s_lshl_b32 s56, s20, 11\ns_add_u32 s56, s56, {QX}")
    k.e(f"v_add_u32 v3, s56, v2")
    for qi in range(NQ):
        k.e(f"ds_read_b128 v[{R.Q[qi]}:{R.Q[qi]+3}], v3 offset:{qi*1024}")
    for qi in range(NQ):
        for i in range(16): k.e(f"v_mov_b32 v{R.O[qi]+i}, 0")
    for p in range(2):
        for i in range(8):
            k.e(f"v_mov_b32 v{R.P[p]+i}, 0")
            k.e(f"v_mov_b32 v{R.V[p]+i}, 0")
    vKn = R.t[5]
    vC = 242
    k.e(f"""
    v_add_u32 v{R.vK}, {CB[0]}, v2
    v_and_b32 v3, 31, v1
    v_min_u32 v3, 16, v3
    v_lshlrev_b32 v3, 4, v3
    v_lshrrev_b32 v4, 5, v1
    v_mul_u32_u24 v4, 272, v4
    v_add_u32 v3, v3, v4
    v_add_u32 v{R.vV}, {CB[0] + 16384}, v3
    v_mov_b32 v{vC}, {CNT}
    s_mov_b32 s35, 0x{f2u(MB_THRESH):08x}
    s_mov_b64 s[26+4:27+4], 0
    """.replace("s[26+4:27+4]", "s[60:61]"))
    k.e("s_waitcnt lgkmcnt(0)")
    for qi in range(NQ):
        a, b = R.t[0], R.t[1]
        q = R.Q[qi]
        k.e(f"v_mov_b32 v{a}, 0")
        for i in range(4):
            k.e(f"v_dot2_f32_bf16 v{a}, v{q+i}, v{q+i}, v{a}")
        k.e("s_nop 3")
        k.e(f"v_mov_b32 v{b}, v{a}")
        k.e("s_nop 1")
        k.e(f"v_permlane32_swap_b32 v{a}, v{b}")
        k.e("s_nop 1")
        k.e(f"v_add_f32 v{a}, v{a}, v{b}")
        k.e(f"v_mul_f32 v{a}, v{a}, v{KM}")
        k.e(f"v_sqrt_f32 v{a}, v{a}")
        k.e("s_nop 0")
        k.e(f"v_mul_f32 v{a}, 0x{f2u(1.00390625):08x}, v{a}")
        k.e(f"v_cmp_nge_f32 vcc, s35, v{a}")
        k.e("s_nop 1")
        k.e("s_or_b64 s[60:61], s[60:61], vcc")
        for i in range(16):
            k.e(f"v_sub_f32 v{R.C[qi]+i}, 0, v{a}")
    fast = k.newlabel("fast")
    k.e("s_cmp_eq_u64 s[60:61], 0")
    k.e(f"s_cbranch_scc1 {fast}")
    for c in range(1, 4):
        lds_poll(k, vC, R.t[0], 56, 4, 4 * c, 57)
    for qi in range(NQ):
        m, tt = R.t[0], R.t[1]; va = R.t[2]
        k.e(f"v_mov_b32 v{m}, 0xff800000")
        for c in range(4):
            lp = k.newlabel("maxloop")
            k.e(f"v_add_u32 v{va}, {CB[c]}, v2")
            k.e("s_mov_b32 s56, 16")
            k.lab(lp)
            k.e(f"ds_read_b128 v[{R.K}:{R.K+3}], v{va}")
            k.e(f"v_add_u32 v{va}, 1024, v{va}")
            k.e("s_waitcnt lgkmcnt(0)")
            k.e(f"v_mfma_f32_32x32x16_bf16 v[{R.S[0]}:{R.S[0]+15}], v[{R.K}:{R.K+3}], v[{R.Q[qi]}:{R.Q[qi]+3}], 0")
            k.e("s_nop 15\ns_nop 3")
            for i in range(8):
                k.e(f"v_max3_f32 v{m}, v{R.S[0]+2*i}, v{R.S[0]+2*i+1}, v{m}")
            k.e(f"s_sub_u32 s56, s56, 1\ns_cmp_lg_u32 s56, 0\ns_cbranch_scc1 {lp}")
        k.e(f"v_mov_b32 v{tt}, v{m}\ns_nop 1\nv_permlane32_swap_b32 v{m}, v{tt}\ns_nop 1\nv_max_f32 v{m}, v{m}, v{tt}")
        for i in range(16): k.e(f"v_sub_f32 v{R.C[qi]+i}, 0, v{m}")
    k.lab(fast)
    k.e(f"ds_read_b128 v[{R.K}:{R.K+3}], v{R.vK}")
    k.e("s_waitcnt lgkmcnt(0)")
    k.e(f"v_mfma_f32_32x32x16_bf16 v[{R.S[0]}:{R.S[0]+15}], v[{R.K}:{R.K+3}], v[{R.Q[0]}:{R.Q[0]+3}], v[{R.C[0]}:{R.C[0]+15}]")
    k.e("s_nop 7\ns_nop 7")
    k.e(f"s_mov_b32 s62, 0\ns_mov_b32 s63, {CB[0]}")
    lp = k.newlabel("attnloop")
    k.e(".p2align 6")
    k.lab(lp)
    U = 16
    def nextchunk():
        sk = k.newlabel("last")
        k.e(f"s_cmp_eq_u32 s63, {CB[0]}")
        k.e(f"s_cselect_b32 s64, {-CHUNK & 0xffffffff}, s63")
        k.e(f"s_add_u32 s64, s64, {CHUNK}")
        k.e(f"v_add_u32 v{vKn}, s64, v2")
        k.e(f"s_cmp_eq_u32 s62, 3\ns_cbranch_scc1 {sk}")
        k.e(f"s_lshl_b32 s65, s62, 2\ns_add_u32 s65, s65, {CNT + 4}")
        k.e(f"v_mov_b32 v{vC}, s65")
        lds_poll(k, vC, R.t[0], 66, 4, 0, 67)
        k.lab(sk)
    for i in range(U):
        kread = f"ds_read_b128 v[{R.K}:{R.K+3}], v{R.vK} offset:{(i+1)*1024}" if i < U - 1 else f"ds_read_b128 v[{R.K}:{R.K+3}], v{vKn}"
        reads = [kread,
                 f"ds_read_b128 v[{R.V[i&1]}:{R.V[i&1]+3}], v{R.vV} offset:{i*1088}",
                 f"ds_read_b128 v[{R.V[i&1]+4}:{R.V[i&1]+7}], v{R.vV} offset:{i*1088+544}"]
        segment(k, R.S[0], R.P[0], (R.S[1], R.K, R.Q[1], R.C[1]), (R.O[1], R.V[(i + 1) & 1], R.P[1]), reads, None)
        segment(k, R.S[1], R.P[1], (R.S[0], R.K, R.Q[0], R.C[0]), (R.O[0], R.V[i & 1], R.P[0]), [], "s_waitcnt lgkmcnt(0)",
                extra=nextchunk if i == U - 2 else None)
    k.e(f"s_sub_u32 s65, s64, s63")
    k.e(f"v_add_u32 v{R.vV}, s65, v{R.vV}")
    k.e(f"v_mov_b32 v{R.vK}, v{vKn}")
    k.e(f"s_mov_b32 s63, s64")
    sk = k.newlabel("nof2")
    k.e(f"s_cmp_lg_u32 s62, 0\ns_cbranch_scc1 {sk}")
    k.e(f"""
    s_waitcnt vmcnt(0)
    s_add_u32 s65, s23, 2
    v_mov_b32 v3, s65
    v_mov_b32 v4, 0
    s_lshl_b32 s65, s26, 2
    s_add_u32 s65, s65, s20
    s_lshl_b32 s65, s65, 2
    s_add_u32 s65, s65, {WS_FLAG2}
    s_mov_b64 exec, 1
    buffer_store_dword v3, v4, s[4:7], s65 offen sc1
    s_mov_b64 exec, -1
    """)
    k.lab(sk)
    if 'a_ch0' in ctx.marks:
        for c in range(4):
            sk2 = k.newlabel("ast")
            k.e(f"s_cmp_lg_u32 s62, {c}\ns_cbranch_scc1 {sk2}")
            mk(f'a_ch{c}')
            k.lab(sk2)
    k.e(f"s_add_u32 s62, s62, 1\ns_cmp_lt_u32 s62, 4\ns_cbranch_scc1 {lp}")
    O_, V_, Ps = R.O[1], R.V[1], R.P[1]
    k.e(f"v_mfma_f32_32x32x16_bf16 v[{O_}:{O_+15}], v[{V_}:{V_+3}], v[{Ps}:{Ps+3}], v[{O_}:{O_+15}]")
    k.e(f"v_mfma_f32_32x32x16_bf16 v[{O_}:{O_+15}], v[{V_+4}:{V_+7}], v[{Ps+4}:{Ps+7}], v[{O_}:{O_+15}]")
    mk('a_end')
    k.e("s_nop 15\ns_nop 7")
    for qi in range(NQ):
        O = R.O[qi]; r = R.t[qi]
        k.e(f"v_rcp_f32 v{r}, v{O+8}")
        k.e("s_nop 0")
        for i in range(8): k.e(f"v_mul_f32 v{O+i}, v{O+i}, v{r}")
        for i in range(4): k.e(f"v_cvt_pk_bf16_f32 v{O+i}, v{O+2*i}, v{O+2*i+1}")
        k.e(f"s_add_u32 s56, s32, {WS_O + qi*1024}")
        k.e(f"buffer_store_dwordx4 v[{O}:{O+3}], v2, s[4:7], s56 offen sc1")
    k.e(f"v_mov_b32 v3, {CNT}\nv_mov_b32 v4, 1")
    k.e("s_mov_b64 exec, 1")
    k.e("ds_add_u32 v3, v4")
    k.e("s_mov_b64 exec, -1")
    k.e("s_waitcnt lgkmcnt(0)")
    mk('a_out')
    ctx.stamp_out(9)
    if ctx.rt: rt_end(k, 76, 0, 4, 20, 56, 4, WS_RT, ctx.done)
    k.e("s_endpgm")

def g_role(ctx, common_after_kernarg):
    k, stamp, D, mk = ctx.k, ctx.stamp, ctx.D, ctx.mk
    b = 8
    def al(n, align=2):
        nonlocal b
        b = (b + align - 1) // align * align
        r = b; b += n
        return r
    acc = [[al(16) for _ in range(2)] for _ in range(2)]
    ring = [al(16) for _ in range(D)]
    wo = al(64)
    xr = al(8)
    vX = [al(1, 1) for _ in range(2)]
    vW = al(2)
    vS4 = al(1, 1); vS32 = al(1, 1)
    vx = al(1, 1); vz = al(1, 1); vt = al(1, 1); vw = al(1, 1)
    t = [al(1, 1) for _ in range(8)]
    big = ring[0]
    ob = ring[0]
    tt0, tt1, tt2, tt3, tt4, tt5 = t[0:6]
    k.e("s_sub_u32 s27, s20, 4")
    if "noprio" not in ctx.exp: k.e("s_setprio 3")
    k.e(f"""
    v_lshrrev_b32 v{tt0}, 3, v1
    v_lshlrev_b32 v{tt0}, 10, v{tt0}
    v_lshrrev_b32 v{tt1}, 4, v1
    v_and_b32 v{tt2}, 7, v1
    v_xor_b32 v{tt3}, v{tt1}, v{tt2}
    v_lshlrev_b32 v{tt3}, 4, v{tt3}
    v_add_u32 v{vX[0]}, v{tt0}, v{tt3}
    v_add_u32 v{tt1}, 4, v{tt1}
    v_xor_b32 v{tt3}, v{tt1}, v{tt2}
    v_lshlrev_b32 v{tt3}, 4, v{tt3}
    v_add_u32 v{vX[1]}, v{tt0}, v{tt3}
    s_lshl_b32 s28, s21, 17
    s_lshl_b32 s56, s27, 15
    s_add_u32 s28, s28, s56
    s_lshl_b32 s29, s27, 12
    """)
    k.e(f"""
    s_and_b32 s56, s27, 1
    s_lshr_b32 s57, s27, 1
    v_lshrrev_b32 v{tt0}, 4, v1
    v_and_b32 v{tt1}, 15, v1
    v_lshrrev_b32 v{tt2}, 1, v{tt1}
    v_and_b32 v{tt1}, 1, v{tt1}
    v_lshlrev_b32 v{tt3}, 1, v{tt0}
    v_add_u32 v{tt3}, s56, v{tt3}
    v_xor_b32 v{tt2}, v{tt2}, v{tt3}
    s_lshl_b32 s58, s57, 5
    v_add_u32 v{tt0}, s58, v{tt0}
    v_mul_u32_u24 v{tt3}, 3584, v{tt0}
    v_lshlrev_b32 v{tt4}, 5, v{tt2}
    v_add_u32 v{tt3}, v{tt3}, v{tt4}
    v_lshlrev_b32 v{tt4}, 4, v{tt1}
    v_add_u32 v{tt3}, v{tt3}, v{tt4}
    s_mul_i32 s58, s22, 224
    v_add_u32 v{tt3}, s58, v{tt3}
    v_lshlrev_b32 v{tt5}, 10, v{tt0}
    v_add_u32 v{tt5}, v{tt5}, v{tt4}
    s_lshl_b32 s58, s22, 6
    s_lshl_b32 s59, s56, 5
    s_add_u32 s58, s58, s59
    v_add_u32 v{tt5}, s58, v{tt5}
    v_cmp_eq_u32 vcc, 7, v{tt2}
    v_mov_b32 v{tt0}, 3584
    v_mov_b32 v{tt1}, 1024
    v_cndmask_b32 v{tt3}, v{tt3}, v{tt5}, vcc
    v_cndmask_b32 v{tt0}, v{tt0}, v{tt1}, vcc
    v_lshlrev_b32 v{vS4}, 2, v{tt0}
    v_lshlrev_b32 v{vS32}, 5, v{tt0}
    s_lshl_b32 s30, s56, 14
    s_lshl_b32 s58, s57, 13
    s_add_u32 s30, s30, s58
    """)
    common_after_kernarg()
    mk('p_karg')
    k.e(f"""
    s_and_b32 s56, s27, 1
    s_cmp_eq_u32 s56, 1
    s_cselect_b32 s58, s50, s48
    s_cselect_b32 s59, s51, s49
    v_mov_b32 v{tt4}, s58
    v_mov_b32 v{tt5}, s38
    v_cndmask_b32 v{tt4}, v{tt4}, v{tt5}, vcc
    v_mov_b32 v{tt5}, s59
    v_mov_b32 v{tt0}, s39
    v_cndmask_b32 v{tt5}, v{tt5}, v{tt0}, vcc
    v_add_co_u32 v{vW}, vcc, v{tt3}, v{tt4}
    v_addc_co_u32 v{vW+1}, vcc, 0, v{tt5}, vcc
    """)
    ROT = 'rot' in ctx.exp
    if ROT:
        k.e("s_and_b32 s56, s22, 3\ns_lshl_b32 s56, s56, 1\ns_add_u32 s36, s21, s56\ns_and_b32 s36, s36, 7")
        k.e(f"s_lshl_b32 s56, s36, 1\nv_mul_lo_u32 v{tt0}, v{vS32}, s56")
        k.e(f"v_add_co_u32 v{vW}, vcc, v{tt0}, v{vW}\nv_addc_co_u32 v{vW+1}, vcc, 0, v{vW+1}, vcc")
        vS512 = t[7]
        k.e(f"v_lshlrev_b32 v{vS512}, 4, v{vS32}")
    def issue_stage(st):
        if 'nodma' in ctx.exp and st >= 2: return
        slot = (st % 3) * SLOT
        if ROT:
            k.e(f"s_add_u32 s37, s36, {st}\ns_and_b32 s37, s37, 7\ns_lshl_b32 s57, s37, 7\ns_add_u32 s57, s57, s28")
        for j in range(4):
            k.e(f"s_add_u32 m0, s29, {slot + XOFF + j*1024}")
            if ROT: k.e(f"s_add_u32 s56, s57, {j*8192}")
            else: k.e(f"s_add_u32 s56, s28, {j*8192 + st*128}")
            k.e(f"buffer_load_dwordx4 v{vX[j&1]}, s[8:11], s56 offen lds")
        for i in range(8):
            k.e(f"s_add_u32 m0, s30, {slot + GOFF + i*1024}")
            k.e("s_nop 0")
            k.e(f"global_load_lds_dwordx4 v[{vW}:{vW+1}], off")
            k.e(f"v_add_co_u32 v{vW}, vcc, v{vS4}, v{vW}")
            k.e(f"v_addc_co_u32 v{vW+1}, vcc, 0, v{vW+1}, vcc")
        k.e(f"v_add_co_u32 v{vW}, vcc, v{vS32}, v{vW}")
        k.e(f"v_addc_co_u32 v{vW+1}, vcc, 0, v{vW+1}, vcc")
        if ROT:
            sk = k.newlabel("nowrap")
            k.e(f"s_cmp_lg_u32 s37, 7\ns_cbranch_scc1 {sk}")
            k.e(f"v_sub_co_u32 v{vW}, vcc, v{vW}, v{vS512}")
            k.e(f"v_subbrev_co_u32 v{vW+1}, vcc, 0, v{vW+1}, vcc")
            k.lab(sk)
    NS = 12
    issue_stage(0)
    mk('p_st0')
    csr = big + 32
    k.e(f"""
    s_lshr_b32 s58, s26, 2
    s_and_b32 s59, s26, 3
    s_mov_b32 s12, s48
    s_mov_b32 s13, s49
    s_mov_b32 s14, {512*3584}
    s_mov_b32 s60, 3584
    s_mov_b32 s61, s58
    s_cmp_ge_u32 s58, 28
    s_cselect_b32 s12, s50, s12
    s_cselect_b32 s13, s51, s13
    s_cselect_b32 s62, 28, 0
    s_sub_u32 s61, s58, s62
    s_cmp_ge_u32 s58, 56
    s_cselect_b32 s12, s38, s12
    s_cselect_b32 s13, s39, s13
    s_cselect_b32 s14, {512*1024}, s14
    s_cselect_b32 s60, 1024, s60
    s_cselect_b32 s62, 56, s62
    s_sub_u32 s61, s58, s62
    s_mov_b32 s15, 0x20000
    s_lshl_b32 s56, s59, 7
    s_lshl_b32 s57, s27, 5
    s_add_u32 s56, s56, s57
    v_lshrrev_b32 v{tt0}, 3, v1
    v_add_u32 v{tt0}, s56, v{tt0}
    v_mul_lo_u32 v{tt0}, v{tt0}, s60
    v_and_b32 v{tt1}, 7, v1
    v_lshlrev_b32 v{tt1}, 4, v{tt1}
    v_add_u32 v{tt0}, v{tt0}, v{tt1}
    s_lshl_b32 s56, s61, 7
    s_lshl_b32 s60, s60, 3
    """)
    for i in range(4):
        k.e(f"buffer_load_dwordx4 v[{csr+4*i}:{csr+4*i+3}], v{tt0}, s[12:15], s56 offen")
        if i < 3: k.e("s_add_u32 s56, s56, s60")
    k.e(f"""
    v_lshrrev_b32 v{tt2}, 2, v1
    v_lshlrev_b32 v{tt2}, 10, v{tt2}
    v_and_b32 v{tt3}, 3, v1
    v_lshlrev_b32 v{tt3}, 4, v{tt3}
    v_add_u32 v{tt2}, v{tt2}, v{tt3}
    s_mul_i32 s63, s2, 9
    s_add_u32 s63, s63, s27
    """)
    for rep in range(3):
        sk = k.newlabel("wdskip")
        if rep == 2: k.e(f"s_cmp_lg_u32 s27, 0\ns_cbranch_scc1 {sk}")
        k.e(f"s_add_u32 s64, s63, {[0, 4, 8][rep]}")
        k.e(f"""
        s_lshr_b32 s65, s64, 4
        s_and_b32 s66, s64, 15
        s_cmp_lt_u32 s65, 112
        s_cselect_b32 s68, s52, s44
        s_cselect_b32 s69, s53, s45
        s_mov_b32 s70, {512*1024}
        s_cselect_b32 s70, {1792*1024}, s70
        s_cselect_b32 s67, 0, 112
        s_sub_u32 s65, s65, s67
        s_lshl_b32 s65, s65, 14
        s_lshl_b32 s66, s66, 6
        s_add_u32 s65, s65, s66
        s_mov_b32 s71, 0x20000
        s_lshl_b32 s66, s27, 10
        s_add_u32 m0, s66, {WDS + rep*4096}
        s_nop 0
        buffer_load_dwordx4 v{tt2}, s[68:71], s65 offen lds
        """)
        if rep == 2: k.lab(sk)
    sen = big + 48
    k.e(f"""
    v_mov_b32 v{sen}, -1
    v_mov_b32 v{sen+1}, -1
    v_mov_b32 v{sen+2}, -1
    v_mov_b32 v{sen+3}, -1
    s_lshl_b32 s56, s21, 2
    s_add_u32 s56, s56, s27
    s_lshl_b32 s56, s56, 5
    s_lshl_b32 s57, s22, 1
    s_add_u32 s56, s56, s57
    s_lshl_b32 s56, s56, 10
    s_add_u32 s56, s56, {WS_O}
    buffer_store_dwordx4 v[{sen}:{sen+3}], v2, s[4:7], s56 offen sc1
    buffer_store_dwordx4 v[{sen}:{sen+3}], v2, s[4:7], s56 offen offset:1024 sc1
    """)
    mk('p_misc')
    k.e("s_waitcnt lgkmcnt(0)")
    k.e("s_barrier")
    mk('p_e1')
    issue_stage(1)
    mk('p_st1')
    k.e(f"s_waitcnt vmcnt({4 + 2 + 2 + NS})")
    mk('p_l0')
    k.e("s_barrier")
    mk('p_e2')
    issue_stage(2)
    k.e(f"s_waitcnt vmcnt({2 + 2*NS})")
    c8 = [big + i for i in range(8)]
    for i in range(4):
        for r in range(4):
            sr_ = csr + 4*i + r
            if i == 0:
                k.e(f"v_lshlrev_b32 v{c8[2*r]}, 16, v{sr_}")
                k.e(f"v_and_b32 v{c8[2*r+1]}, 0xffff0000, v{sr_}")
            else:
                k.e(f"v_lshlrev_b32 v{tt4}, 16, v{sr_}")
                k.e(f"v_and_b32 v{tt5}, 0xffff0000, v{sr_}")
                k.e(f"v_add_f32 v{c8[2*r]}, v{c8[2*r]}, v{tt4}")
                k.e(f"v_add_f32 v{c8[2*r+1]}, v{c8[2*r+1]}, v{tt5}")
    allreduce_add(k, c8, [big + 8 + i for i in range(8)], ["dpp:row_ror:8", "p16", "p32"])
    k.e(f"""
    v_lshlrev_b32 v{tt0}, 5, v1
    s_lshl_b32 s56, s27, 8
    s_add_u32 s56, s56, {CSP}
    v_add_u32 v{tt0}, s56, v{tt0}
    s_mov_b64 exec, 0xff
    ds_write_b128 v{tt0}, v[{c8[0]}:{c8[3]}]
    ds_write_b128 v{tt0}, v[{c8[4]}:{c8[7]}] offset:16
    s_mov_b64 exec, -1
    """)
    k.e(f"""
    v_lshrrev_b32 v{tt0}, 4, v1
    v_and_b32 v{tt1}, 1, v{tt0}
    v_lshrrev_b32 v{tt0}, 1, v{tt0}
    v_and_b32 v{tt2}, 15, v1
    v_lshrrev_b32 v{tt3}, 2, v{tt2}
    v_and_b32 v{tt2}, 3, v{tt2}
    v_lshlrev_b32 v{tt0}, 2, v{tt0}
    v_add_u32 v{tt0}, v{tt0}, v{tt3}
    v_lshlrev_b32 v{tt0}, 6, v{tt0}
    v_lshlrev_b32 v{tt1}, 5, v{tt1}
    v_add_u32 v{tt0}, v{tt0}, v{tt1}
    v_lshlrev_b32 v{tt2}, 3, v{tt2}
    v_add_u32 v{tt0}, v{tt0}, v{tt2}
    s_lshl_b32 s56, s27, 10
    s_add_u32 s56, s56, {WDS}
    v_add_u32 v{tt0}, s56, v{tt0}
    """)
    wq4 = big + 16
    for rep in range(3):
        k.e(f"ds_read_b64_tr_b16 v[{wq4+4*rep}:{wq4+4*rep+1}], v{tt0} offset:{rep*4096}")
        k.e(f"ds_read_b64_tr_b16 v[{wq4+4*rep+2}:{wq4+4*rep+3}], v{tt0} offset:{rep*4096+512}")
    k.e(f"s_lshl_b32 s56, s63, 10\ns_add_u32 s56, s56, {WS_WD}")
    k.e("s_waitcnt lgkmcnt(0)")
    k.e(f"buffer_store_dwordx4 v[{wq4}:{wq4+3}], v2, s[4:7], s56 offen sc1")
    k.e(f"s_add_u32 s56, s56, 4096")
    k.e(f"buffer_store_dwordx4 v[{wq4+4}:{wq4+7}], v2, s[4:7], s56 offen sc1")
    sk = k.newlabel("wd9")
    k.e(f"s_cmp_lg_u32 s27, 0\ns_cbranch_scc1 {sk}")
    k.e(f"s_add_u32 s56, s56, 4096")
    k.e(f"buffer_store_dwordx4 v[{wq4+8}:{wq4+11}], v2, s[4:7], s56 offen sc1")
    k.lab(sk)
    lK = k.newlabel("finK"); lV = k.newlabel("finV"); lC = k.newlabel("finC"); lE = k.newlabel("finE")
    k.e(f"s_cmp_eq_u32 s27, 0\ns_cbranch_scc1 {lK}")
    k.e(f"s_cmp_eq_u32 s27, 1\ns_cbranch_scc1 {lV}")
    k.e(f"s_branch {lE}")
    def kt_setup():
        k.e("s_lshl_b32 s31, s21, 2\ns_lshr_b32 s56, s22, 2\ns_add_u32 s31, s31, s56\ns_and_b32 s32, s22, 3")
    k.lab(lK)
    kt_setup()
    k.e(f"""
    v_and_b32 v{tt0}, 7, v1
    v_lshrrev_b32 v{tt1}, 5, v1
    v_lshlrev_b32 v{tt2}, 3, v{tt1}
    v_add_u32 v{tt2}, v{tt2}, v{tt0}
    v_lshlrev_b32 v{tt2}, 5, v{tt2}
    v_add_u32 v{tt2}, {KVP}, v{tt2}
    """)
    for p in range(4):
        k.e(f"ds_read_b128 v[{big+8*p}:{big+8*p+3}], v{tt2} offset:{p*1024}")
        k.e(f"ds_read_b128 v[{big+8*p+4}:{big+8*p+7}], v{tt2} offset:{p*1024+16}")
    k.e(f"""
    v_lshlrev_b32 v{tt1}, 5, v{tt1}
    v_add_u32 v{tt1}, v{tt1}, v{tt0}
    s_lshl_b32 s56, s32, 3
    v_add_u32 v{tt1}, s56, v{tt1}
    v_lshlrev_b32 v{tt1}, 4, v{tt1}
    s_waitcnt lgkmcnt(0)
    """)
    for i in range(8):
        k.e(f"v_add_f32 v{big+i}, v{big+i}, v{big+8+i}")
        k.e(f"v_add_f32 v{big+16+i}, v{big+16+i}, v{big+24+i}")
    for i in range(8): k.e(f"v_add_f32 v{big+i}, v{big+i}, v{big+16+i}")
    for i in range(4): k.e(f"v_cvt_pk_bf16_f32 v{big+8+i}, v{big+2*i}, v{big+2*i+1}")
    k.e(f"""
    s_lshl_b32 s56, s31, 10
    s_add_u32 s56, s56, {WS_K}
    s_mov_b32 s58, 0xff
    s_mov_b32 s59, 0xff
    s_mov_b64 exec, s[58:59]
    buffer_store_dwordx4 v[{big+8}:{big+11}], v{tt1}, s[4:7], s56 offen sc1
    s_mov_b64 exec, -1
    v_mov_b32 v{tt3}, 0
    """)
    for i in range(4):
        k.e(f"v_lshlrev_b32 v{tt4}, 16, v{big+8+i}")
        k.e(f"v_and_b32 v{tt5}, 0xffff0000, v{big+8+i}")
        k.e(f"v_fma_f32 v{tt3}, v{tt4}, v{tt4}, v{tt3}")
        k.e(f"v_fma_f32 v{tt3}, v{tt5}, v{tt5}, v{tt3}")
    k.e(f"v_mov_b32 v{tt4}, v{tt3}\ns_nop 1\nv_permlane32_swap_b32 v{tt3}, v{tt4}\ns_nop 1\nv_add_f32 v{tt3}, v{tt3}, v{tt4}")
    wave_allreduce_max(k, tt3, tt4)
    k.e(f"""
    s_lshl_b32 s56, s26, 2
    s_add_u32 s56, s56, {WS_KMAX}
    v_mov_b32 v{tt4}, 0
    s_mov_b64 exec, 1
    buffer_store_dword v{tt3}, v{tt4}, s[4:7], s56 offen sc1
    s_mov_b64 exec, -1
    s_branch {lE}
    """)
    k.lab(lV)
    kt_setup()
    k.e(f"""
    v_and_b32 v{tt0}, 15, v1
    v_lshrrev_b32 v{tt1}, 5, v1
    v_lshlrev_b32 v{tt2}, 4, v{tt1}
    v_add_u32 v{tt2}, v{tt2}, v{tt0}
    v_lshlrev_b32 v{tt2}, 4, v{tt2}
    v_add_u32 v{tt2}, {KVP + 512}, v{tt2}
    """)
    for p in range(4):
        k.e(f"ds_read_b128 v[{big+4*p}:{big+4*p+3}], v{tt2} offset:{p*1024}")
    k.e(f"""
    v_mul_u32_u24 v{tt1}, 272, v{tt1}
    v_lshlrev_b32 v{tt3}, 4, v{tt0}
    v_add_u32 v{tt3}, v{tt3}, v{tt1}
    s_lshr_b32 s56, s32, 1
    s_mul_i32 s56, s56, 544
    s_mul_i32 s57, s31, 1088
    s_add_u32 s56, s56, s57
    s_add_u32 s56, s56, {WS_V}
    s_and_b32 s57, s32, 1
    s_lshl_b32 s58, s57, 3
    s_add_u32 s58, s58, s56
    s_waitcnt lgkmcnt(0)
    """)
    for i in range(4):
        k.e(f"v_add_f32 v{big+i}, v{big+i}, v{big+4+i}")
        k.e(f"v_add_f32 v{big+8+i}, v{big+8+i}, v{big+12+i}")
    for i in range(4): k.e(f"v_add_f32 v{big+i}, v{big+i}, v{big+8+i}")
    k.e(f"v_cvt_pk_bf16_f32 v{big+4}, v{big}, v{big+1}")
    k.e(f"v_cvt_pk_bf16_f32 v{big+5}, v{big+2}, v{big+3}")
    k.e(f"""
    s_mov_b32 s60, 0xffff
    s_mov_b32 s61, 0xffff
    s_mov_b64 exec, s[60:61]
    buffer_store_dwordx2 v[{big+4}:{big+5}], v{tt3}, s[4:7], s58 offen sc1
    s_mov_b64 exec, -1
    v_mov_b32 v{big+8}, 0x3f803f80
    v_mov_b32 v{big+9}, 0x3f803f80
    v_add_u32 v{tt1}, 256, v{tt1}
    s_lshl_b32 s58, s57, 3
    s_add_u32 s58, s58, s56
    s_mov_b32 s60, 1
    s_mov_b32 s61, 1
    s_mov_b64 exec, s[60:61]
    buffer_store_dwordx2 v[{big+8}:{big+9}], v{tt1}, s[4:7], s58 offen sc1
    s_mov_b64 exec, -1
    s_branch {lE}
    """)
    k.lab(lE)
    k.e(f"s_waitcnt vmcnt({NS+2}) lgkmcnt(0)")
    mk('p_fin')
    k.e("s_barrier")
    mk('p_b1')
    def cs_final():
        sk = k.newlabel("nocsf")
        k.e(f"s_cmp_lg_u32 s27, 2\ns_cbranch_scc1 {sk}")
        k.e(f"""
        v_lshlrev_b32 v{tt0}, 2, v1
        v_add_u32 v{tt1}, {CSP}, v{tt0}
        """)
        for p in range(4): k.e(f"ds_read_b32 v{big+p}, v{tt1} offset:{p*256}")
        k.e("s_waitcnt lgkmcnt(0)")
        k.e(f"v_add_f32 v{big}, v{big}, v{big+1}\nv_add_f32 v{big+2}, v{big+2}, v{big+3}\nv_add_f32 v{big}, v{big}, v{big+2}")
        k.e(f"""
        s_lshr_b32 s56, s26, 2
        s_lshl_b32 s56, s56, 10
        s_and_b32 s57, s26, 3
        s_lshl_b32 s57, s57, 2
        s_add_u32 s56, s56, s57
        s_add_u32 s56, s56, {WS_CS}
        v_lshlrev_b32 v{tt0}, 4, v1
        buffer_store_dword v{big}, v{tt0}, s[4:7], s56 offen sc1
        """)
        k.lab(sk)

    k.e("s_lshr_b32 s33, s2, 3\ns_and_b32 s33, s33, 3")
    def chunk_dma(i):
        k.e(f"""
        s_add_u32 s56, s33, {i}
        s_and_b32 s56, s56, 3
        s_lshl_b32 s57, s56, 14
        s_add_u32 s57, s57, {WS_K}
        s_mul_i32 s58, s56, 17408
        s_add_u32 s58, s58, {WS_V - 16384}
        s_lshl_b32 s59, s27, 10
        s_add_u32 s57, s57, s59
        s_add_u32 s58, s58, s59
        """)
        for m in range(9):
            n0 = 4 * m
            sk = None
            if m == 8:
                sk = k.newlabel("ch8"); k.e(f"s_cmp_lg_u32 s27, 0\ns_cbranch_scc1 {sk}")
            src = 57 if m < 4 else 58
            k.e(f"s_add_u32 m0, s59, {CB[i] + n0*1024}")
            k.e(f"s_add_u32 s60, s{src}, {n0*1024}")
            k.e(f"buffer_load_dwordx4 v2, s[4:7], s60 offen sc1 lds")
            if sk: k.lab(sk)
    for st in range(1, 6):
        if st == 1: cs_final()
        if st == 5:
            k.e(f"s_add_u32 s34, s23, 1\ns_mov_b32 s35, {WS_FLAG1}\ns_mov_b32 s62, 200000")
            k.e(f"buffer_load_dwordx4 v[{big}:{big+3}], v2, s[4:7], s35 offen sc1")
        issue_stage(st + 2)
        k.e(f"s_waitcnt vmcnt({NS})")
        if st == 5:
            lp = k.newlabel("f1poll"); ok = k.newlabel("f1ok")
            k.lab(lp)
            for i in range(4): k.e(f"v_xor_b32 v{big+i}, s34, v{big+i}")
            k.e(f"v_or3_b32 v{big}, v{big}, v{big+1}, v{big+2}")
            k.e(f"v_or_b32 v{big}, v{big}, v{big+3}")
            k.e(f"v_cmp_ne_u32 vcc, 0, v{big}")
            k.e("s_sub_u32 s62, s62, 1")
            k.e("s_cmp_eq_u64 vcc, 0")
            k.e(f"s_cbranch_scc1 {ok}")
            k.e("s_sleep 2")
            k.e(f"buffer_load_dwordx4 v[{big}:{big+3}], v2, s[4:7], s35 offen sc1")
            k.e("s_waitcnt vmcnt(0)")
            k.e(f"s_cmp_lg_u32 s62, 0\ns_cbranch_scc1 {lp}")
            k.lab(ok)
        k.e("s_barrier")
        mk(f'p_b{st+1}')
    chunk_dma(0)
    k.e("s_waitcnt vmcnt(8)")
    k.e("s_barrier")
    chunk_dma(1)
    k.e("s_waitcnt vmcnt(8)")
    k.e("s_barrier")
    k.e("s_setprio 0")
    mk('p_T')
    chunk_dma(2); chunk_dma(3)
    def sig(c):
        k.e(f"v_mov_b32 v{vt}, {CNT + 4*c}\nv_mov_b32 v{vw}, 1")
        k.e("s_mov_b64 exec, 1")
        k.e(f"ds_add_u32 v{vt}, v{vw}")
        k.e("s_mov_b64 exec, -1")
    k.e("s_waitcnt vmcnt(16)"); sig(1)
    k.e("s_waitcnt vmcnt(8)"); sig(2)
    k.e("s_waitcnt vmcnt(0)"); sig(3)
    if 'gload' in ctx.exp:
        ga = [8 + 16*i for i in range(7)]
        gA = [[120 + 28*bq + 4*i for i in range(7)] for bq in range(2)]
        gB = [176, 180]
        va = 184
        k.e(f"v_lshlrev_b32 v{va}, 3, v1\nv_lshlrev_b32 v{va+1}, 4, v1")
        for i in range(112): k.e(f"v_mov_b32 v{8+i}, 0")
        for i in range(64): k.e(f"v_mov_b32 v{120+i}, 0")
        NST = 8
        for e_ in ctx.exp.split(","):
            if e_.startswith("nst"): NST = int(e_[3:])
        if 'gprio' in ctx.exp: k.e("s_setprio 3")
        lp = k.newlabel("gl")
        k.e(f"s_mov_b32 s56, {NST}")
        k.lab(lp)
        for q in range(4):
            bq = q & 1
            rd = [f"ds_read_b128 v[{gB[bq^1]}:{gB[bq^1]+3}], v{va+1} offset:{q*1024}"]
            for i in range(7):
                for jj in range(2):
                    r = gA[bq^1][i] + 2*jj
                    rd.append(f"ds_read_b64_tr_b16 v[{r}:{r+1}], v{va} offset:{q*8192 + i*1024 + jj*512}")
            if 'glnord' in ctx.exp: rd = []
            for i in range(7):
                c = ga[i]
                if 'glnomf' not in ctx.exp: k.e(f"v_mfma_f32_32x32x16_bf16 v[{c}:{c+15}], v[{gA[bq][i]}:{gA[bq][i]+3}], v[{gB[bq]}:{gB[bq]+3}], v[{c}:{c+15}]")
                if 'glearly' in ctx.exp:
                    for r in rd[4*i:4*i+4]: k.e(r)
                else:
                    for r in rd[3*i:3*i+3]: k.e(r)
            k.e("s_waitcnt lgkmcnt(0)")
        k.e(f"s_sub_u32 s56, s56, 1\ns_cmp_lg_u32 s56, 0\ns_cbranch_scc1 {lp}")
        mk('g_load')
    sk = k.newlabel("noep")
    k.e(f"s_or_b32 s56, s26, s27\ns_cmp_lg_u32 s56, 0\ns_cbranch_scc1 {sk}")
    k.e(f"""
    s_add_u32 s56, s23, 2
    v_mov_b32 v{vt}, s56
    v_mov_b32 v{vw}, 0
    s_mov_b32 s56, {WS_EPOCH}
    s_mov_b64 exec, 1
    buffer_store_dword v{vt}, v{vw}, s[4:7], s56 offen sc1
    s_mov_b64 exec, -1
    """)
    k.lab(sk)
    k.e(f"""
    s_mul_i32 s30, s27, {28*16}
    s_lshl_b32 s56, s25, 1
    s_add_u32 s30, s30, s56
    s_lshl_b32 s30, s30, 10
    s_add_u32 s30, s30, {WS_WD}
    s_lshl_b32 s56, s24, 1
    s_mul_i32 s28, s56, 112
    s_mul_i32 s57, s27, 28
    s_add_u32 s28, s28, s57
    s_lshl_b32 s28, s28, 10
    s_add_u32 s28, s28, {WS_H}
    s_add_u32 s29, s28, {112*1024}
    """)
    return finish_g(ctx, locals())


def finish_g(ctx, L):
    k, stamp, D, mk = ctx.k, ctx.stamp, ctx.D, ctx.mk
    acc, ring, wo, xr, vx, vz, vt, vw, ob = (L[n] for n in ("acc", "ring", "wo", "xr", "vx", "vz", "vt", "vw", "ob"))
    k.e(f"""
    s_lshl_b32 s56, s27, 3
    s_add_u32 s56, s56, 112
    s_lshl_b32 s56, s56, 4
    s_lshl_b32 s57, s25, 1
    s_add_u32 s56, s56, s57
    s_lshl_b32 s56, s56, 10
    s_add_u32 s56, s56, {WS_WD}
    """)
    for i in range(8):
        k.e(f"buffer_load_dwordx4 v[{wo+8*i}:{wo+8*i+3}], v2, s[4:7], s56 offen sc1")
        k.e(f"buffer_load_dwordx4 v[{wo+8*i+4}:{wo+8*i+7}], v2, s[4:7], s56 offen offset:1024 sc1")
        if i < 7: k.e("s_add_u32 s56, s56, 16384")
    k.e(f"""
    s_lshl_b32 s56, s27, 6
    v_add_u32 v{vx}, s56, v1
    v_lshrrev_b32 v{vt}, 2, v{vx}
    v_and_b32 v{vx}, 3, v{vx}
    v_lshlrev_b32 v{vx}, 5, v{vx}
    v_lshlrev_b32 v{vw}, 10, v{vt}
    v_add_u32 v{vx}, v{vx}, v{vw}
    s_lshl_b32 s56, s24, 16
    s_lshl_b32 s57, s25, 7
    s_add_u32 s31, s56, s57
    buffer_load_dwordx4 v[{xr}:{xr+3}], v{vx}, s[8:11], s31 offen
    buffer_load_dwordx4 v[{xr+4}:{xr+7}], v{vx}, s[8:11], s31 offen offset:16
    v_mov_b32 v{vz}, 0
    s_mov_b32 s12, s54
    s_mov_b32 s13, s55
    s_mov_b32 s14, {2048*1024}
    s_mov_b32 s15, 0x20000
    """)
    lp = k.newlabel("f2poll"); ok = k.newlabel("f2ok")
    k.e(f"""
    s_add_u32 s34, s23, 2
    s_lshl_b32 s35, s21, 8
    s_add_u32 s35, s35, {WS_FLAG2}
    s_mov_b32 s62, 200000
    v_lshlrev_b32 v{vw}, 2, v1
    """)
    k.lab(lp)
    k.e(f"buffer_load_dword v{vt}, v{vw}, s[4:7], s35 offen sc1")
    k.e("s_waitcnt vmcnt(0)")
    k.e(f"v_cmp_ne_u32 vcc, s34, v{vt}")
    k.e("s_sub_u32 s62, s62, 1")
    k.e("s_cmp_eq_u64 vcc, 0")
    k.e(f"s_cbranch_scc1 {ok}")
    k.e("s_sleep 8")
    k.e(f"s_cmp_lg_u32 s62, 0\ns_cbranch_scc1 {lp}")
    k.lab(ok)
    mk('g_f2')
    def loads(i):
        r = ring[i % D]
        k.e(f"buffer_load_dwordx4 v[{r}:{r+3}], v2, s[4:7], s30 offen sc1")
        k.e(f"buffer_load_dwordx4 v[{r+4}:{r+7}], v2, s[4:7], s30 offen offset:1024 sc1")
        k.e(f"buffer_load_dwordx4 v[{r+8}:{r+11}], v2, s[4:7], s28 offen offset:{(i%4)*1024} sc1")
        k.e(f"buffer_load_dwordx4 v[{r+12}:{r+15}], v2, s[4:7], s29 offen offset:{(i%4)*1024} sc1")
        k.e(f"s_add_u32 s30, s30, 16384")
        if i % 4 == 3:
            k.e("s_add_u32 s28, s28, 4096\ns_add_u32 s29, s29, 4096")
    def mf(A0, A1, B0, B1, first=False):
        for (a, t_, A, B) in ((0, 0, A0, B0), (1, 0, A1, B0), (0, 1, A0, B1), (1, 1, A1, B1)):
            c = acc[a][t_]
            cin = "0" if first else f"v[{c}:{c+15}]"
            k.e(f"v_mfma_f32_32x32x16_bf16 v[{c}:{c+15}], v[{A}:{A+3}], v[{B}:{B+3}], {cin}")
    for i in range(D): loads(i)
    for i in range(28):
        n = 4 * min(D - 1, 27 - i)
        k.e(f"s_waitcnt vmcnt({n})")
        r = ring[i % D]
        mf(r, r + 4, r + 8, r + 12, first=(i == 0))
        if i + D < 28: loads(i + D)
    mk('g_ffn')
    k.e(f"v_mov_b32 v{vw}, {CNT}")
    lds_poll(k, vw, vt, 56, 4, 0, 57)
    k.e(f"""
    s_lshl_b32 s56, s24, 6
    s_lshl_b32 s57, s27, 3
    s_add_u32 s56, s56, s57
    s_lshl_b32 s56, s56, 10
    s_add_u32 s28, s56, {WS_O}
    s_add_u32 s29, s28, {32*1024}
    s_add_u32 s30, s28, 4096
    s_add_u32 s33, s29, 4096
    s_mov_b32 s62, 100000
    """)
    lp = k.newlabel("opoll"); ok = k.newlabel("ook")
    k.lab(lp)
    for i in range(8):
        so0 = 28 if i < 4 else 30
        so1 = 29 if i < 4 else 33
        k.e(f"buffer_load_dwordx4 v[{ob+8*i}:{ob+8*i+3}], v2, s[4:7], s{so0} offen offset:{(i%4)*1024} sc1")
        k.e(f"buffer_load_dwordx4 v[{ob+8*i+4}:{ob+8*i+7}], v2, s[4:7], s{so1} offen offset:{(i%4)*1024} sc1")
    for i in range(8):
        k.e(f"s_waitcnt vmcnt({2*(7-i)})")
        o = ob + 8 * i
        if i == 0:
            k.e(f"v_max3_u32 v{vt}, v{o}, v{o+1}, v{o+2}")
            rest = list(range(o + 3, o + 8))
        else:
            rest = list(range(o, o + 8))
        while len(rest) >= 2:
            k.e(f"v_max3_u32 v{vt}, v{rest[0]}, v{rest[1]}, v{vt}"); rest = rest[2:]
        if rest: k.e(f"v_max_u32 v{vt}, v{rest[0]}, v{vt}")
    k.e(f"v_cmp_eq_u32 vcc, -1, v{vt}")
    k.e("s_sub_u32 s62, s62, 1")
    k.e("s_cmp_eq_u64 vcc, 0")
    k.e(f"s_cbranch_scc1 {ok}")
    k.e(f"s_cmp_lg_u32 s62, 0\ns_cbranch_scc1 {lp}")
    k.lab(ok)
    mk('g_o')
    for i in range(8):
        mf(wo + 8 * i, wo + 8 * i + 4, ob + 8 * i, ob + 8 * i + 4)
    k.e(f"""
    v_and_b32 v{vt}, 31, v1
    v_mul_u32_u24 v{vt}, 272, v{vt}
    v_lshrrev_b32 v{vw}, 5, v1
    v_lshlrev_b32 v{vw}, 4, v{vw}
    v_add_u32 v{vt}, v{vt}, v{vw}
    s_mul_i32 s56, s27, 17408
    v_add_u32 v{vt}, s56, v{vt}
    s_nop 7
    s_nop 7
    """)
    for a in range(2):
        for t_ in range(2):
            for q in range(4):
                c = acc[a][t_] + 4 * q
                k.e(f"ds_write_b128 v{vt}, v[{c}:{c+3}] offset:{RED + t_*32*272 + (32*a + 8*q)*4}")
    k.e("s_waitcnt lgkmcnt(0)")
    k.e("s_barrier")
    k.e(f"""
    s_lshl_b32 s56, s27, 6
    v_add_u32 v{vt}, s56, v1
    v_lshrrev_b32 v{vw}, 2, v{vt}
    v_mul_u32_u24 v{vw}, 272, v{vw}
    v_and_b32 v{vt}, 3, v{vt}
    v_lshlrev_b32 v{vt}, 6, v{vt}
    v_add_u32 v{vt}, v{vt}, v{vw}
    """)
    rb = acc[0][0]
    for g in range(4):
        for q in range(4):
            k.e(f"ds_read_b128 v[{rb+16*g+4*q}:{rb+16*g+4*q+3}], v{vt} offset:{RED + g*17408+16*q}")
    k.e("s_waitcnt lgkmcnt(0)")
    for i in range(16):
        k.e(f"v_add_f32 v{rb+i}, v{rb+i}, v{rb+16+i}")
        k.e(f"v_add_f32 v{rb+32+i}, v{rb+32+i}, v{rb+48+i}")
    for i in range(16):
        k.e(f"v_add_f32 v{rb+i}, v{rb+i}, v{rb+32+i}")
    for i in range(8):
        k.e(f"v_lshlrev_b32 v{rb+16+2*i}, 16, v{xr+i}")
        k.e(f"v_and_b32 v{rb+16+2*i+1}, 0xffff0000, v{xr+i}")
    for i in range(16):
        k.e(f"v_add_f32 v{rb+i}, v{rb+i}, v{rb+16+i}")
    for i in range(8):
        k.e(f"v_cvt_pk_bf16_f32 v{rb+32+i}, v{rb+2*i}, v{rb+2*i+1}")
    k.e(f"buffer_store_dwordx4 v[{rb+32}:{rb+35}], v{vx}, s[12:15], s31 offen")
    k.e(f"buffer_store_dwordx4 v[{rb+36}:{rb+39}], v{vx}, s[12:15], s31 offen offset:16")
    mk('g_end')
    ctx.stamp_out(9)
    if ctx.rt: rt_end(k, 76, 0, 4, 20, 56, 4, WS_RT, ctx.done)
    return 256

if __name__ == "__main__":
    import argparse
    ap = argparse.ArgumentParser()
    ap.add_argument("out"); ap.add_argument("--stamps", action="store_true"); ap.add_argument("--rt", action="store_true")
    ap.add_argument("--dbgq", action="store_true"); ap.add_argument("--D", type=int, default=4); ap.add_argument("--exp", default="")
    ap.add_argument("--wg", type=int, default=5); ap.add_argument("--marks", default=DEF_MARKS)
    a = ap.parse_args()
    kt, la = mega_kernel(stamps=a.stamps, rt=a.rt, dbgq=a.dbgq, D=a.D, exp=a.exp, stamp_wg=a.wg, marks=a.marks)
    open(a.out, "w").write(assemble_file([la], [kt]))
```

```python
WS_K    = 0x200000
WS_V    = 0x210000
WS_KV   = 0x200000
KVT = 2112
KV_BYTES = 65536 + 64 * 1088
WS_KMAX = 0x228000
WS_STAT = 0x230000
WS_CS   = 0x238000
WS_H    = 0x300000
WS_O    = 0xA00000
WS_WD   = 0xC00000
WS_FLAG = 0xF00000
WS_EPOCH = WS_FLAG
WS_FLAG1 = WS_FLAG + 0x1000
WS_FLAG1B = WS_FLAG + 0x1800
WS_FLAG2 = WS_FLAG + 0x2000
WS_DBG  = WS_FLAG + 0x8000
WS_RT = 0xF10000
WS_Q    = 0x000000
WS_SIZE = 0x10000000
QSCALE = 0.25 * 1.4426950408889634
MB_THRESH = 48.0
WS_F1  = 0xF20000
WS_F1B = 0xF24000
WS_F2  = 0xF28000
WS_TAB = 0x1000000
WS_F1L = 0x1200000
```

```python
from asmlib import *
from layout import *
from attn import f2u, wave_allreduce_max, AttnRegs
from proj import allreduce_add

WRING = 0
XRING = 65536
KVR = 114688
NSLOT = 2
TPC = 8
CHUNK = TPC * KVT
NCH = 64 // TPC
SCR = KVR + NSLOT * CHUNK
CNT = SCR
STATS = SCR + 256
XAL = STATS + 1024
CSP = XAL + 1792
WDS = CSP + 1024
assert WDS + 9216 <= 163840
LDS_TOTAL = 163840
WKV = XRING
WVO = 16384 + 128
X8 = WKV + 32768 + 128
KVP = X8 + 8320
KVPS = 1152
ST8 = KVP + 4 * KVPS
assert ST8 + 64 <= KVR
QBASE = [0, 16384, 32768, 49152, KVR, KVR + 16384, XRING, XRING + 16384]
def XSLOT(st): return XRING + ((st + 2) % 3) * 16384
RED = 0
C_KVM, C_F1, C_F1OK, C_KVR, C_MISC, C_XA, C_ADONE, C_RED, C_F2, C_QS, C_GI, C_FIN, C_ST, C_STACK = [4 * i for i in range(14)]
C_EP = 60
C_GP = 64
C_AP = 80
C_Q = 96
C_RW = 112
C_RX = 128
C_KS = 144
C_KVC = 160
NW = 12
VG = 168

class Ctx: pass
class LQ:
    def __init__(self, k): self.k = k; self.q = []
    def op(self, text, tag=None): self.k.e(text); self.q.append(tag)
    def wait(self, *tags):
        idx = -1
        for t in tags:
            for i, x in enumerate(self.q):
                if x == t: idx = max(idx, i)
        if idx < 0: return
        n = len(self.q) - 1 - idx
        self.k.e(f"s_waitcnt lgkmcnt({min(n, 15)})")
        self.q = self.q[idx + 1:]

def sig(k, vaddr, off):
    k.e(f"s_mov_b64 exec, 2\nds_add_u32 v{vaddr}, v1 offset:{off}\ns_mov_b64 exec, -1")
def sign(k, vaddr, off, n):
    k.e(f"s_mov_b64 exec, {1 << n}\nds_add_u32 v{vaddr}, v1 offset:{off}\ns_mov_b64 exec, -1")

def tab_init(k, vtmp):
    k.e(f"""
    s_lshl_b32 s3, s26, 4
    s_add_u32 s3, s3, s20
    s_lshl_b32 s3, s3, 8
    s_add_u32 s3, s3, {WS_TAB}
    v_lshlrev_b32 v{vtmp}, 2, v1
    buffer_store_dword v1, v{vtmp}, s[4:7], s3 offen
    """)
def dsig(k, addr, value):
    if isinstance(addr, int): k.e(f"s_mov_b32 m0, {addr}")
    else: k.e(f"s_add_u32 m0, {addr}")
    if isinstance(value, int): k.e(f"s_add_u32 s82, s3, {4*value}")
    else: k.e(f"s_lshl_b32 s82, {value}, 2\ns_add_u32 s82, s82, s3")
    k.e("s_mov_b64 exec, 1\nbuffer_load_dword v2, s[4:7], s82 offen lds\ns_mov_b64 exec, -1")

def poll(k, vC, off, target, vt, st=56, lim=57, sleep=1):
    lp = k.newlabel("lp"); ok = k.newlabel("ok")
    k.e(f"s_mov_b32 s{lim}, 400000")
    k.lab(lp)
    k.e(f"ds_read_b32 v{vt}, v{vC} offset:{off}")
    k.e("s_waitcnt lgkmcnt(0)")
    k.e(f"v_readfirstlane_b32 s{st}, v{vt}")
    k.e(f"s_sub_u32 s{lim}, s{lim}, 1")
    k.e(f"s_cmp_ge_u32 s{st}, {target}")
    k.e(f"s_cbranch_scc1 {ok}")
    k.e(f"s_sleep {sleep}")
    k.e(f"s_cmp_lg_u32 s{lim}, 0")
    k.e(f"s_cbranch_scc1 {lp}")
    k.lab(ok)

def poll4(k, vPP, starget, vt, lim=57, sleep=2):
    lp = k.newlabel("lp4"); ok = k.newlabel("ok4")
    k.e(f"s_mov_b32 s{lim}, 400000")
    k.lab(lp)
    k.e(f"ds_read_b32 v{vt}, v{vPP}")
    k.e("s_waitcnt lgkmcnt(0)")
    k.e(f"v_cmp_gt_u32 vcc, {starget}, v{vt}")
    k.e(f"s_sub_u32 s{lim}, s{lim}, 1")
    k.e("s_cmp_eq_u64 vcc, 0")
    k.e(f"s_cbranch_scc1 {ok}")
    k.e(f"s_sleep {sleep}")
    k.e(f"s_cmp_lg_u32 s{lim}, 0")
    k.e(f"s_cbranch_scc1 {lp}")
    k.lab(ok)

def gpoll(k, big, nload, soff, starget, sleep, vaddr=2, dw=4):
    lp = k.newlabel("gp"); ok = k.newlabel("gpok")
    k.e("s_mov_b32 s62, 100000")
    k.lab(lp)
    n = 0
    for i in range(nload):
        if dw == 4: k.e(f"buffer_load_dwordx4 v[{big+4*i}:{big+4*i+3}], v{vaddr}, s[4:7], s{soff} offen offset:{1024*i} sc1"); n += 4
        else: k.e(f"buffer_load_dword v{big+i}, v{vaddr}, s[4:7], s{soff} offen sc1"); n += 1
    k.e("s_waitcnt vmcnt(0)")
    for i in range(n): k.e(f"v_xor_b32 v{big+i}, s{starget}, v{big+i}")
    for i in range(1, n): k.e(f"v_or_b32 v{big}, v{big}, v{big+i}")
    k.e(f"v_cmp_ne_u32 vcc, 0, v{big}")
    k.e("s_sub_u32 s62, s62, 1")
    k.e("s_cmp_eq_u64 vcc, 0")
    k.e(f"s_cbranch_scc1 {ok}")
    k.e(f"s_sleep {sleep}")
    k.e(f"s_cmp_lg_u32 s62, 0\ns_cbranch_scc1 {lp}")
    k.lab(ok)

class Pace:
    def __init__(self, k, vaddr, vtmp, n=2): self.k, self.a, self.t, self.n, self.c = k, vaddr, vtmp, n, 0
    def __call__(self, text):
        self.k.e(text); self.c += 1
        if self.n and self.c % self.n == 0:
            self.k.e(f"ds_read_b32 v{self.t}, v{self.a}\ns_waitcnt lgkmcnt(0)")

def srd(k, d, lo, hi, size):
    k.e(f"s_mov_b32 s{d}, s{lo}\ns_mov_b32 s{d+1}, s{hi}\ns_mov_b32 s{d+2}, {size}\ns_mov_b32 s{d+3}, 0x20000")

def stats_math(k, S, Q, a_, r_):
    k.e(f"""
    v_mul_f32 v{S}, 0x{f2u(1/512):08x}, v{S}
    v_mul_f32 v{Q}, 0x{f2u(1/512):08x}, v{Q}
    v_fma_f32 v{Q}, -v{S}, v{S}, v{Q}
    v_max_f32 v{Q}, 0, v{Q}
    v_cvt_pk_bf16_f32 v{r_}, v{S}, v{Q}
    v_lshlrev_b32 v{a_}, 16, v{r_}
    v_and_b32 v{r_}, 0xffff0000, v{r_}
    v_add_f32 v{r_}, 0x{f2u(1e-5):08x}, v{r_}
    v_cvt_pk_bf16_f32 v{r_}, v{r_}, v{r_}
    v_and_b32 v{r_}, 0xffff0000, v{r_}
    v_sqrt_f32 v{r_}, v{r_}
    v_xor_b32 v{a_}, 0x80000000, v{a_}
    v_cvt_pk_bf16_f32 v{r_}, v{r_}, v{r_}
    v_and_b32 v{r_}, 0xffff0000, v{r_}
    v_rcp_f32 v{r_}, v{r_}
    s_nop 0
    """)

DEF_MARKS = "a_q,a_m,a_f1,a_kv,a_go,a_end,a_out;g_w,g_kvm,g_fin,g_f1s,g_f1e,g_f2,g_ffn,g_end;p_a,p_b,p_c,p_d,p_e,p_f,p_g,p_h"

def v7_kernel(name="mega_kernel", stamps=False, rt=False, D=4, dbgq=False, exp="", stamp_wg=5, marks=DEF_MARKS):
    k = KB(name)
    exps = set(exp.split(","))
    markidx = {}
    for grp in marks.split(";"):
        for i, n in enumerate(grp.split(",")): markidx[n] = i + 1
    done = k.newlabel("done")
    def stamp(i):
        if stamps: k.e(f"s_memtime s[{84+2*i}:{85+2*i}]")
    def mk(n):
        if n in markidx: stamp(markidx[n])
    def stamp_out(nst=9):
        if not stamps: return
        sk = k.newlabel("nost")
        k.e("s_waitcnt vmcnt(0) lgkmcnt(0)")
        for i in range(1, nst): k.e(f"s_sub_u32 s{84+2*i}, s{84+2*i}, s84")
        k.e(f"s_cmp_eq_u32 s2, {stamp_wg}\ns_cbranch_scc0 {sk}")
        k.e(f"s_lshl_b32 s56, s20, 6\ns_add_u32 s56, s56, {WS_DBG}")
        k.e("v_mov_b32 v3, 0")
        k.e("s_mov_b64 exec, 1")
        for i in range(1, nst):
            k.e(f"v_mov_b32 v4, s{84+2*i}")
            k.e(f"buffer_store_dword v4, v3, s[4:7], s56 offen offset:{4*(i-1)}")
            k.e("s_nop 1")
        k.e("s_mov_b64 exec, -1")
        k.e("s_waitcnt vmcnt(0)")
        k.lab(sk)
    def finish():
        stamp_out()
        if rt: rt_end(k, 76, 0, 4, 20, 56, 4, WS_RT, done)
        k.e("s_endpgm")
    ctx = Ctx()
    ctx.k, ctx.mk, ctx.exps, ctx.D, ctx.dbgq, ctx.finish, ctx.marks = k, mk, exps, D, dbgq, finish, markidx
    k.e(f"""
    s_cmp_ge_u32 s2, 256
    s_cbranch_scc1 {done}
    s_load_dwordx16 s[36:51], s[0:1], 0
    s_load_dwordx2 s[52:53], s[0:1], 64
    s_load_dwordx2 s[54:55], s[0:1], 72
    s_load_dwordx2 s[4:5], s[0:1], 88
    """)
    stamp(0)
    if rt: rt_begin(k, 76)
    k.e(f"""
    v_lshrrev_b32 v3, 6, v0
    v_and_b32 v1, 63, v0
    v_readfirstlane_b32 s20, v3
    v_lshlrev_b32 v2, 4, v1
    s_and_b32 s56, s2, 7
    s_lshr_b32 s57, s2, 3
    s_and_b32 s21, s56, 1
    s_lshl_b32 s21, s21, 3
    s_and_b32 s58, s57, 7
    s_add_u32 s21, s21, s58
    s_lshr_b32 s22, s56, 1
    s_lshl_b32 s22, s22, 2
    s_lshr_b32 s58, s57, 3
    s_add_u32 s22, s22, s58
    s_lshl_b32 s24, s21, 1
    s_lshr_b32 s58, s22, 3
    s_add_u32 s24, s24, s58
    s_and_b32 s25, s22, 7
    s_lshl_b32 s26, s21, 4
    s_add_u32 s26, s26, s22
    """)
    def after_kernarg(epoch=True):
        k.e(f"""
        s_waitcnt lgkmcnt(0)
        s_mov_b32 s6, {WS_SIZE}
        s_mov_b32 s7, 0x20000
        s_mov_b32 s8, s36
        s_mov_b32 s9, s37
        s_mov_b32 s10, {2048*1024}
        s_mov_b32 s11, 0x20000
        """)
        if epoch: k.e(f"s_add_u32 s56, s4, {WS_EPOCH}\ns_addc_u32 s57, s5, 0\ns_load_dword s23, s[56:57], 0")
    ctx.after_kernarg = after_kernarg
    lG = k.newlabel("roleG"); lP = k.newlabel("roleP")
    k.e(f"s_cmp_ge_u32 s20, 8\ns_cbranch_scc1 {lP}\ns_cmp_ge_u32 s20, 4\ns_cbranch_scc1 {lG}")
    a_role(ctx)
    k.lab(lG)
    g_role(ctx)
    k.lab(lP)
    p_role(ctx)
    k.lab(done)
    return kernel_text(name, k.text(), VG), (name, 256, 64 * NW, LDS_TOTAL)

def segment(k, S, P, qk, pv, reads, wait, extra=None, after_reads=None):
    E = [f"v_exp_f32 v{S+i}, v{S+i}" for i in range(16)]
    C = [f"v_cvt_pk_bf16_f32 v{P+i}, v{S+2*i}, v{S+2*i+1}" for i in range(8)]
    dS, K_, Q_, C_ = qk
    O_, V_, Ps = pv
    mqk = f"v_mfma_f32_32x32x16_bf16 v[{dS}:{dS+15}], v[{K_}:{K_+3}], v[{Q_}:{Q_+3}], v[{C_}:{C_+15}]"
    m0 = f"v_mfma_f32_32x32x16_bf16 v[{O_}:{O_+15}], v[{V_}:{V_+3}], v[{Ps}:{Ps+3}], v[{O_}:{O_+15}]"
    m1 = f"v_mfma_f32_32x32x16_bf16 v[{O_}:{O_+15}], v[{V_+4}:{V_+7}], v[{Ps+4}:{Ps+7}], v[{O_}:{O_+15}]"
    if wait: k.e(wait)
    k.e(mqk)
    for r in reads: k.e(r)
    if after_reads: after_reads()
    seq = E[0:3] + [m0] + E[3:6] + [m1, E[6], E[7], C[0], E[8], E[9], C[1], E[10], E[11], C[2], E[12], E[13], C[3], E[14], E[15], C[4], C[5], C[6], C[7]]
    for s in seq: k.e(s)
    if extra: extra()

def klane(k, d, t0, t1, t2):
    k.e(f"""
    v_and_b32 v{t0}, 31, v1
    v_lshrrev_b32 v{t1}, 4, v{t0}
    v_lshlrev_b32 v{t1}, 1, v{t1}
    v_lshrrev_b32 v{t2}, 2, v{t0}
    v_and_b32 v{t2}, 1, v{t2}
    v_add_u32 v{t1}, v{t1}, v{t2}
    v_lshlrev_b32 v{d}, 8, v{t1}
    v_lshlrev_b32 v{t2}, 3, v{t2}
    v_lshrrev_b32 v{t1}, 5, v1
    v_lshlrev_b32 v{t1}, 3, v{t1}
    v_add_u32 v{t2}, v{t2}, v{t1}
    v_and_b32 v{t1}, 3, v{t0}
    v_add_u32 v{t2}, v{t2}, v{t1}
    v_lshrrev_b32 v{t1}, 3, v{t0}
    v_and_b32 v{t1}, 1, v{t1}
    v_lshlrev_b32 v{t1}, 2, v{t1}
    v_add_u32 v{t2}, v{t2}, v{t1}
    v_and_b32 v{t2}, 15, v{t2}
    v_lshlrev_b32 v{t2}, 4, v{t2}
    v_add_u32 v{d}, v{d}, v{t2}
    """)

def a_role(ctx):
    k, mk, exps = ctx.k, ctx.mk, ctx.exps
    NQ = 2
    R = AttnRegs(2, 8)
    e = R.end
    vC, vP, vKn, vT, vKl = e, e + 1, e + 2, e + 3, e + 4
    QN = [e + 5, e + 6]
    vAPP = e + 7
    assert vAPP < VG
    accQ, accC = R.S[0], R.S[1]
    Bq = [R.C[0] + 4 * i for i in range(4)]
    Aq = [R.C[1] + 4 * i for i in range(4)]
    ones = R.O[0]
    vB = [R.O[1] + i for i in range(4)]
    vA = R.O[1] + 4
    sS, sQ = R.O[1] + 5, R.O[1] + 6
    sS2, sQ2, vA2, u0, u1 = R.O[1] + 7, R.O[1] + 8, R.O[1] + 9, R.O[1] + 10, R.O[1] + 11
    t0, t1, t2, t3, t4, t5 = R.t
    xr = [R.C[0], R.C[0] + 4]
    k.e(f"""
    s_and_b32 s28, s20, 1
    s_lshr_b32 s29, s20, 1
    v_mov_b32 v{vC}, {CNT}
    s_lshl_b32 s56, s20, 2
    s_add_u32 s56, s56, {CNT + C_AP}
    v_mov_b32 v{vP}, s56
    s_lshr_b32 s58, s26, 2
    s_lshl_b32 s58, s58, 5
    s_and_b32 s59, s26, 2
    s_lshl_b32 s59, s59, 3
    s_add_u32 s58, s58, s59
    s_and_b32 s59, s26, 1
    s_lshl_b32 s59, s59, 2
    s_add_u32 s58, s58, s59
    s_and_b32 s59, s20, 1
    s_lshl_b32 s59, s59, 1
    s_add_u32 s58, s58, s59
    s_lshr_b32 s59, s20, 1
    s_lshl_b32 s59, s59, 3
    s_add_u32 s30, s58, s59
    s_barrier
    """)
    ctx.after_kernarg(epoch=False)
    k.e(f"""
    s_lshl_b32 s56, s30, 10
    s_add_u32 s57, s56, 1024
    buffer_load_dwordx4 v[{xr[0]}:{xr[0]+3}], v2, s[8:11], s56 offen
    buffer_load_dwordx4 v[{xr[1]}:{xr[1]+3}], v2, s[8:11], s57 offen
    """)
    sig(k, vC, C_GI)
    tab_init(k, t0)
    k.e(f"s_lshl_b32 s33, s20, 2\ns_add_u32 s33, s33, {CNT}")
    if 'ap0' in exps: k.e("s_setprio 2")
    k.e(f"""
    v_and_b32 v{t0}, 31, v1
    v_lshrrev_b32 v{t1}, 5, v1
    v_lshrrev_b32 v{t2}, 1, v{t0}
    v_and_b32 v{t2}, 7, v{t2}
    v_xor_b32 v{t2}, v{t2}, v{t1}
    s_lshl_b32 s56, s28, 5
    v_add_u32 v{t0}, s56, v{t0}
    v_lshlrev_b32 v{t0}, 7, v{t0}
    """)
    k.e(f"s_lshl_b32 s57, s29, 2\nv_xor_b32 v{t2}, s57, v{t2}")
    for q in range(4):
        k.e(f"v_xor_b32 v{t3}, {2*q}, v{t2}\nv_lshlrev_b32 v{t3}, 4, v{t3}\nv_add_u32 v{vB[q]}, v{t0}, v{t3}")
    k.e(f"""
    v_and_b32 v{t0}, 15, v1
    v_lshrrev_b32 v{t2}, 2, v{t0}
    v_lshlrev_b32 v{t1}, 3, v{t1}
    v_add_u32 v{t1}, v{t1}, v{t2}
    v_lshlrev_b32 v{t1}, 7, v{t1}
    v_lshrrev_b32 v{t2}, 3, v{t0}
    v_xor_b32 v{t2}, s29, v{t2}
    v_lshlrev_b32 v{t2}, 6, v{t2}
    v_add_u32 v{t1}, v{t1}, v{t2}
    v_lshrrev_b32 v{t2}, 4, v1
    v_and_b32 v{t2}, 1, v{t2}
    v_lshlrev_b32 v{t2}, 5, v{t2}
    v_add_u32 v{t1}, v{t1}, v{t2}
    v_and_b32 v{t0}, 3, v{t0}
    v_lshlrev_b32 v{t0}, 3, v{t0}
    v_add_u32 v{t1}, v{t1}, v{t0}
    v_add_u32 v{t1}, 8192, v{t1}
    s_lshl_b32 s56, s29, 12
    v_add_u32 v{vA}, s56, v{t1}
    s_sub_u32 s56, 4096, s56
    v_add_u32 v{vA2}, s56, v{t1}
    v_mov_b32 v{sS}, 0
    v_mov_b32 v{sQ}, 0
    v_mov_b32 v{sS2}, 0
    v_mov_b32 v{sQ2}, 0
    """)
    for i in range(4): k.e(f"v_mov_b32 v{ones+i}, 0x3f803f80")
    klane(k, vKl, t0, t1, t2)
    k.e(f"v_min_u32 v{vAPP}, 3, v1\nv_lshlrev_b32 v{vAPP}, 2, v{vAPP}\nv_add_u32 v{vAPP}, {CNT + C_AP}, v{vAPP}")
    k.e("""
    s_lshl_b32 s56, s24, 1
    s_add_u32 s56, s56, s28
    s_lshl_b32 s56, s56, 5
    s_lshl_b32 s57, s25, 2
    s_add_u32 s56, s56, s57
    s_lshl_b32 s57, s29, 1
    s_add_u32 s56, s56, s57
    s_lshl_b32 s32, s56, 10
    """)
    u = [R.C[1] + i for i in range(16)]
    ES = [u[0], u[2]]; EQ = [u[1], u[3]]; E2S = [u[4], u[6]]; E2Q = [u[5], u[7]]
    k.e("s_waitcnt vmcnt(0)")
    for i in range(4):
        for j in range(2):
            a0, a1 = u[8 + 2*j], u[9 + 2*j]
            k.e(f"v_lshlrev_b32 v{a0}, 16, v{xr[j]+i}\nv_and_b32 v{a1}, 0xffff0000, v{xr[j]+i}")
            if i == 0:
                k.e(f"v_mov_b32 v{ES[j]}, v{a0}\nv_mov_b32 v{E2S[j]}, v{a1}\nv_mul_f32 v{EQ[j]}, v{a0}, v{a0}\nv_mul_f32 v{E2Q[j]}, v{a1}, v{a1}")
            else:
                k.e(f"v_add_f32 v{ES[j]}, v{ES[j]}, v{a0}\nv_add_f32 v{E2S[j]}, v{E2S[j]}, v{a1}\nv_fma_f32 v{EQ[j]}, v{a0}, v{a0}, v{EQ[j]}\nv_fma_f32 v{E2Q[j]}, v{a1}, v{a1}, v{E2Q[j]}")
    for j in range(2): k.e(f"v_add_f32 v{ES[j]}, v{ES[j]}, v{E2S[j]}\nv_add_f32 v{EQ[j]}, v{EQ[j]}, v{E2Q[j]}")
    allreduce_add(k, [ES[0], EQ[0], ES[1], EQ[1]], u[8:12],
                  ["dpp:quad_perm:[1,0,3,2]", "dpp:quad_perm:[2,3,0,1]", "dpp:row_half_mirror", "dpp:row_mirror", "p16", "p32"])
    SO = [u[12], u[14]]
    k.e(f"v_cmp_gt_u32 vcc, 32, v1\nv_cndmask_b32 v{ES[0]}, v{ES[1]}, v{ES[0]}, vcc\nv_cndmask_b32 v{EQ[0]}, v{EQ[1]}, v{EQ[0]}, vcc")
    stats_math(k, ES[0], EQ[0], SO[0], SO[0] + 1)
    k.e(f"""
    v_lshrrev_b32 v{u[8]}, 5, v1
    v_lshlrev_b32 v{u[8]}, 3, v{u[8]}
    s_lshl_b32 s56, s20, 4
    s_add_u32 s56, s56, {ST8}
    v_add_u32 v{u[9]}, s56, v{u[8]}
    s_lshl_b32 s56, s30, 3
    s_add_u32 s56, s56, {WS_STAT}
    s_mov_b32 s58, 1
    s_mov_b32 s59, 1
    s_mov_b64 exec, s[58:59]
    ds_write_b64 v{u[9]}, v[{SO[0]}:{SO[0]+1}]
    buffer_store_dwordx2 v[{SO[0]}:{SO[0]+1}], v{u[8]}, s[4:7], s56 offen sc1
    s_mov_b64 exec, -1
    """)
    sig(k, vC, C_ST)
    mk('a_st')
    Bs = [Bq, [R.P[0] + 4 * i for i in range(4)]]
    As = [Aq, [R.V[0] + 4 * i for i in range(4)]]
    cur = 0
    lq = LQ(k)
    vQP = R.O[1] + 12
    k.e(f"v_min_u32 v{vQP}, 3, v1\nv_lshlrev_b32 v{vQP}, 2, v{vQP}\nv_add_u32 v{vQP}, {CNT + C_Q}, v{vQP}")
    def qwait(b):
        sk = k.newlabel("qrdy"); lp_ = k.newlabel("qlp")
        k.e(f"s_cmp_ge_u32 s31, {b+1}\ns_cbranch_scc1 {sk}")
        k.e("s_mov_b32 s57, 400000")
        k.lab(lp_)
        k.e(f"ds_read_b32 v{vT}, v{vQP}\ns_waitcnt lgkmcnt(0)")
        for j in range(4): k.e(f"v_readlane_b32 s{64+j}, v{vT}, {j}")
        k.e("s_min_u32 s64, s64, s65\ns_min_u32 s66, s66, s67\ns_min_u32 s31, s64, s66\ns_sub_u32 s57, s57, 1")
        k.e(f"s_cmp_ge_u32 s31, {b+1}\ns_cbranch_scc1 {sk}\ns_sleep 1\ns_cmp_lg_u32 s57, 0\ns_cbranch_scc1 {lp_}")
        k.lab(sk)
    def qreads(b):
        nonlocal cur
        out = []
        d = QBASE[b] - cur
        if d:
            for r in vB + [vA, vA2]:
                out.append(lambda r=r, d=d: k.e(f"v_add_u32 v{r}, {d}, v{r}" if d > 0 else f"v_subrev_u32 v{r}, {-d}, v{r}"))
            cur = QBASE[b]
        for q in range(4):
            B_, A_ = Bs[b & 1][q], As[b & 1][q]
            va_ = vA if q < 2 else vA2
            out.append(lambda B_=B_, q=q: lq.op(f"ds_read_b128 v[{B_}:{B_+3}], v{vB[q]}", ("B", b, q)))
            out.append(lambda A_=A_, va_=va_, q=q: lq.op(f"ds_read_b64_tr_b16 v[{A_}:{A_+1}], v{va_} offset:{(q&1)*2048}", ("A", b, q)))
            out.append(lambda A_=A_, va_=va_, q=q: lq.op(f"ds_read_b64_tr_b16 v[{A_+2}:{A_+3}], v{va_} offset:{(q&1)*2048+512}", ("A", b, q)))
        return out
    def qcomp(b, nxt):
        nxt = list(nxt)
        per = (len(nxt) + 7) // 8
        for q in range(4):
            lq.wait(("A", b, q), ("B", b, q))
            B_, A_ = Bs[b & 1][q], As[b & 1][q]
            first = (b == 0 and q == 0)
            cq = "0" if first else f"v[{accQ}:{accQ+15}]"
            cc = "0" if first else f"v[{accC}:{accC+15}]"
            k.e(f"v_mfma_f32_32x32x16_bf16 v[{accQ}:{accQ+15}], v[{A_}:{A_+3}], v[{B_}:{B_+3}], {cq}")
            for _ in range(per):
                if nxt: nxt.pop(0)()
            k.e(f"v_mfma_f32_32x32x16_bf16 v[{accC}:{accC+15}], v[{A_}:{A_+3}], v[{ones}:{ones+3}], {cc}")
            for _ in range(per):
                if nxt: nxt.pop(0)()
        for x in nxt: x()
    k.e("s_mov_b32 s31, 0")
    qwait(0)
    for x in qreads(0): x()
    for b in range(8):
        nxt = []
        if b + 1 < 8:
            qwait(b + 1)
            nxt = qreads(b + 1)
        qcomp(b, nxt)
        if 'cds' in exps: dsig(k, f"s33, {C_AP}", b + 1)
        else:
            k.e("s_mov_b64 exec, 2"); lq.op(f"ds_add_u32 v{vP}, v1"); k.e("s_mov_b64 exec, -1")
        if b == 2:
            k.e("s_waitcnt vmcnt(0)")
            k.e("s_mov_b64 exec, 2"); lq.op(f"ds_add_u32 v{vC}, v1 offset:{C_STACK}"); k.e("s_mov_b64 exec, -1")
        mk(f'a_b{b}')
    mk('a_q')
    big = R.C[0]
    csr = R.P[0]
    tt0, tt1, tt2, tt3, tt4, tt5 = R.t
    nocs = k.newlabel("nocs")
    k.e(f"""
    s_and_b32 s56, s2, 1
    s_lshl_b32 s56, s56, 5
    s_lshr_b32 s57, s2, 3
    s_add_u32 s56, s56, s57
    s_lshr_b32 s58, s56, 2
    s_and_b32 s69, s56, 3
    s_lshr_b32 s59, s22, 2
    s_mul_i32 s59, s59, 7
    s_cmp_ge_u32 s58, 7
    s_cselect_b32 s12, s50, s48
    s_cselect_b32 s13, s51, s49
    s_cselect_b32 s60, 7, 0
    s_cselect_b32 s61, 28, 0
    s_sub_u32 s60, s58, s60
    s_add_u32 s60, s60, s59
    s_add_u32 s68, s60, s61
    s_mov_b32 s14, {512*3584}
    s_mov_b32 s15, 0x20000
    s_cmp_ge_u32 s58, 14
    s_cselect_b32 s70, 0, 1
    s_cbranch_scc1 {nocs}
    s_lshl_b32 s56, s69, 7
    s_lshl_b32 s57, s20, 5
    s_add_u32 s56, s56, s57
    v_lshrrev_b32 v{tt0}, 3, v1
    v_add_u32 v{tt0}, s56, v{tt0}
    v_mul_u32_u24 v{tt0}, 3584, v{tt0}
    v_and_b32 v{tt1}, 7, v1
    v_lshlrev_b32 v{tt1}, 4, v{tt1}
    v_add_u32 v{tt0}, v{tt0}, v{tt1}
    s_lshl_b32 s56, s60, 7
    """)
    for i in range(4):
        k.e(f"buffer_load_dwordx4 v[{csr+4*i}:{csr+4*i+3}], v{tt0}, s[12:15], s56 offen")
        if i < 3: k.e(f"s_add_u32 s56, s56, {8*3584}")
    k.lab(nocs)
    k.e(f"""
    v_lshrrev_b32 v{tt2}, 2, v1
    v_lshlrev_b32 v{tt2}, 10, v{tt2}
    v_and_b32 v{tt3}, 3, v1
    v_lshlrev_b32 v{tt3}, 4, v{tt3}
    v_add_u32 v{tt2}, v{tt2}, v{tt3}
    s_mul_i32 s63, s2, 9
    s_add_u32 s63, s63, s20
    """)
    for rep in range(3):
        sk = k.newlabel("wdskip")
        if rep == 2: k.e(f"s_cmp_lg_u32 s20, 0\ns_cbranch_scc1 {sk}")
        k.e(f"s_add_u32 s64, s63, {[0, 4, 8][rep]}")
        k.e(f"""
        s_lshr_b32 s65, s64, 4
        s_and_b32 s66, s64, 15
        s_cmp_lt_u32 s65, 112
        s_cselect_b32 s16, s52, s44
        s_cselect_b32 s17, s53, s45
        s_mov_b32 s18, {512*1024}
        s_cselect_b32 s18, {1792*1024}, s18
        s_cselect_b32 s67, 0, 112
        s_sub_u32 s65, s65, s67
        s_lshl_b32 s65, s65, 14
        s_lshl_b32 s66, s66, 6
        s_add_u32 s65, s65, s66
        s_mov_b32 s19, 0x20000
        s_lshl_b32 s66, s20, 10
        s_add_u32 m0, s66, {WDS + rep*4096}
        s_nop 0
        buffer_load_dwordx4 v{tt2}, s[16:19], s65 offen lds
        """)
        if rep == 2: k.lab(sk)
    sen = R.V[0]
    for i in range(4): k.e(f"v_mov_b32 v{sen+i}, -1")
    k.e(f"s_add_u32 s56, s32, {WS_O}")
    k.e(f"buffer_store_dwordx4 v[{sen}:{sen+3}], v2, s[4:7], s56 offen sc1")
    k.e(f"buffer_store_dwordx4 v[{sen}:{sen+3}], v2, s[4:7], s56 offen offset:1024 sc1")
    k.e("s_waitcnt vmcnt(2)")
    nocs2 = k.newlabel("nocs2")
    k.e(f"s_cmp_eq_u32 s70, 0\ns_cbranch_scc1 {nocs2}")
    c8 = [big + i for i in range(8)]
    for i in range(4):
        for r in range(4):
            sr_ = csr + 4*i + r
            if i == 0:
                k.e(f"v_lshlrev_b32 v{c8[2*r]}, 16, v{sr_}")
                k.e(f"v_and_b32 v{c8[2*r+1]}, 0xffff0000, v{sr_}")
            else:
                k.e(f"v_lshlrev_b32 v{tt4}, 16, v{sr_}")
                k.e(f"v_and_b32 v{tt5}, 0xffff0000, v{sr_}")
                k.e(f"v_add_f32 v{c8[2*r]}, v{c8[2*r]}, v{tt4}")
                k.e(f"v_add_f32 v{c8[2*r+1]}, v{c8[2*r+1]}, v{tt5}")
    allreduce_add(k, c8, [big + 8 + i for i in range(8)], ["dpp:row_ror:8", "p16", "p32"])
    k.e(f"""
    v_lshlrev_b32 v{tt0}, 5, v1
    s_lshl_b32 s56, s20, 8
    s_add_u32 s56, s56, {CSP}
    v_add_u32 v{tt0}, s56, v{tt0}
    s_mov_b64 exec, 0xff
    ds_write_b128 v{tt0}, v[{c8[0]}:{c8[3]}]
    ds_write_b128 v{tt0}, v[{c8[4]}:{c8[7]}] offset:16
    s_mov_b64 exec, -1
    """)
    k.lab(nocs2)
    sig(k, vC, C_QS)
    k.e(f"""
    v_lshrrev_b32 v{tt0}, 4, v1
    v_and_b32 v{tt1}, 1, v{tt0}
    v_lshrrev_b32 v{tt0}, 1, v{tt0}
    v_and_b32 v{tt2}, 15, v1
    v_lshrrev_b32 v{tt3}, 2, v{tt2}
    v_and_b32 v{tt2}, 3, v{tt2}
    v_lshlrev_b32 v{tt0}, 2, v{tt0}
    v_add_u32 v{tt0}, v{tt0}, v{tt3}
    v_lshlrev_b32 v{tt0}, 6, v{tt0}
    v_lshlrev_b32 v{tt1}, 5, v{tt1}
    v_add_u32 v{tt0}, v{tt0}, v{tt1}
    v_lshlrev_b32 v{tt2}, 3, v{tt2}
    v_add_u32 v{tt0}, v{tt0}, v{tt2}
    s_lshl_b32 s56, s20, 10
    s_add_u32 s56, s56, {WDS}
    v_add_u32 v{tt0}, s56, v{tt0}
    """)
    wq4 = big + 16
    for rep in range(3):
        k.e(f"ds_read_b64_tr_b16 v[{wq4+4*rep}:{wq4+4*rep+1}], v{tt0} offset:{rep*4096}")
        k.e(f"ds_read_b64_tr_b16 v[{wq4+4*rep+2}:{wq4+4*rep+3}], v{tt0} offset:{rep*4096+512}")
    k.e(f"s_lshl_b32 s56, s63, 10\ns_add_u32 s56, s56, {WS_WD}")
    k.e("s_waitcnt lgkmcnt(0)")
    k.e(f"buffer_store_dwordx4 v[{wq4}:{wq4+3}], v2, s[4:7], s56 offen sc1")
    k.e(f"s_add_u32 s56, s56, 4096")
    k.e(f"buffer_store_dwordx4 v[{wq4+4}:{wq4+7}], v2, s[4:7], s56 offen sc1")
    sk = k.newlabel("wd9")
    k.e(f"s_cmp_lg_u32 s20, 0\ns_cbranch_scc1 {sk}")
    k.e(f"s_add_u32 s56, s56, 4096")
    k.e(f"buffer_store_dwordx4 v[{wq4+8}:{wq4+11}], v2, s[4:7], s56 offen sc1")
    k.lab(sk)
    sk = k.newlabel("nocsf")
    k.e(f"s_cmp_lg_u32 s20, 2\ns_cbranch_scc1 {sk}\ns_cmp_eq_u32 s70, 0\ns_cbranch_scc1 {sk}")
    poll(k, vC, C_QS, 4, vT)
    k.e(f"v_lshlrev_b32 v{tt0}, 2, v1\nv_add_u32 v{tt1}, {CSP}, v{tt0}")
    for p in range(4): k.e(f"ds_read_b32 v{big+p}, v{tt1} offset:{p*256}")
    k.e("s_waitcnt lgkmcnt(0)")
    k.e(f"v_add_f32 v{big}, v{big}, v{big+1}\nv_add_f32 v{big+2}, v{big+2}, v{big+3}\nv_add_f32 v{big}, v{big}, v{big+2}")
    k.e(f"""
    s_lshl_b32 s56, s68, 10
    s_lshl_b32 s57, s69, 2
    s_add_u32 s56, s56, s57
    s_add_u32 s56, s56, {WS_CS}
    v_lshlrev_b32 v{tt0}, 4, v1
    buffer_store_dword v{big}, v{tt0}, s[4:7], s56 offen sc1
    """)
    k.lab(sk)
    mk('a_m')
    sk = k.newlabel("nof1")
    k.e(f"s_cmp_lg_u32 s20, 0\ns_cbranch_scc1 {sk}")
    poll(k, vC, C_F1, 2, vT)
    k.e(f"ds_read_b32 v{vT}, v{vC} offset:{C_EP}\ns_waitcnt lgkmcnt(0)\nv_readfirstlane_b32 s23, v{vT}")
    k.e(f"s_add_u32 s34, s23, 1\ns_and_b32 s36, s2, 7\ns_lshl_b32 s36, s36, 11\ns_add_u32 s36, s36, {WS_F1}")
    gpoll(k, big, 2, 36, 34, 3)
    sig(k, vC, C_F1OK)
    sk2 = k.newlabel("noep")
    k.e(f"s_cmp_lg_u32 s26, 0\ns_cbranch_scc1 {sk2}")
    k.e(f"""
    s_add_u32 s56, s23, 2
    v_mov_b32 v{tt0}, s56
    v_mov_b32 v{tt1}, 0
    s_mov_b32 s56, {WS_EPOCH}
    s_mov_b64 exec, 1
    buffer_store_dword v{tt0}, v{tt1}, s[4:7], s56 offen sc1
    s_mov_b64 exec, -1
    s_waitcnt vmcnt(0)
    """)
    k.lab(sk2)
    k.lab(sk)
    poll(k, vC, C_F1OK, 1, vT)
    k.e(f"ds_read_b32 v{vT}, v{vC} offset:{C_EP}\ns_waitcnt lgkmcnt(0)\nv_readfirstlane_b32 s23, v{vT}")
    poll4(k, vAPP, 8, vT)
    mk('a_f1')
    k.e("s_lshr_b32 s37, s2, 3\ns_lshl_b32 s59, s20, 10")
    adma = Pace(k, vC, vT, 0 if 'nopace' in exps else (1 if 'pace1' in exps else 2))
    def share(c):
        k.e(f"s_add_u32 s56, s37, {c}\ns_and_b32 s56, s56, {NCH-1}\ns_mul_i32 s57, s56, {CHUNK}\ns_add_u32 s57, s57, {WS_KV}\ns_add_u32 s57, s57, s59")
        for m in range(4):
            k.e(f"s_add_u32 m0, s59, {KVR + c*CHUNK + m*4096}")
            k.e(f"s_add_u32 s60, s57, {m*4096}")
            adma(f"buffer_load_dwordx4 v2, s[4:7], s60 offen sc1 lds")
        sk = k.newlabel("h17")
        k.e(f"s_cmp_lg_u32 s20, 0\ns_cbranch_scc1 {sk}")
        k.e(f"s_mov_b32 m0, {KVR + c*CHUNK + 16384}")
        k.e(f"s_add_u32 s60, s57, 16384")
        k.e("s_mov_b32 s66, -1\ns_mov_b32 s67, 0\ns_mov_b64 exec, s[66:67]")
        k.e(f"buffer_load_dwordx4 v2, s[4:7], s60 offen sc1 lds")
        k.e("s_mov_b64 exec, -1")
        k.lab(sk)
    k.e("s_waitcnt vmcnt(0)") if False else None
    st2 = big + 6
    k.e(f"""
    v_and_b32 v{tt0}, 31, v1
    v_lshlrev_b32 v{tt0}, 3, v{tt0}
    s_lshl_b32 s56, s24, 1
    s_add_u32 s56, s56, s28
    s_lshl_b32 s56, s56, 8
    s_add_u32 s56, s56, {WS_STAT}
    s_mov_b32 s57, {WS_KMAX}
    buffer_load_dwordx2 v[{st2}:{st2+1}], v{tt0}, s[4:7], s56 offen sc1
    buffer_load_dwordx4 v[{big}:{big+3}], v2, s[4:7], s57 offen sc1
    """)
    share(0)
    sk = k.newlabel("nost")
    k.e(f"s_cmp_lg_u32 s20, 1\ns_cbranch_scc1 {sk}")
    k.e(f"s_lshl_b32 s56, s21, 10\ns_add_u32 s56, s56, {WS_STAT}\ns_mov_b32 m0, {STATS}\ns_nop 0")
    k.e(f"buffer_load_dwordx4 v2, s[4:7], s56 offen sc1 lds")
    k.lab(sk)
    dsig(k, f"s33, {C_KS}", 1)
    share(1)
    dsig(k, f"s33, {C_KS}", 2)
    for qi in range(NQ):
        for i in range(16): k.e(f"v_mov_b32 v{R.O[qi]+i}, 0")
    for p in range(2):
        for i in range(8):
            k.e(f"v_mov_b32 v{R.P[p]+i}, 0")
            k.e(f"v_mov_b32 v{R.V[p]+i}, 0")
    k.e(f"""
    v_add_u32 v{R.vK}, {KVR}, v{vKl}
    v_and_b32 v3, 31, v1
    v_min_u32 v3, 16, v3
    v_lshlrev_b32 v3, 4, v3
    v_lshrrev_b32 v4, 5, v1
    v_mul_u32_u24 v4, 272, v4
    v_add_u32 v3, v3, v4
    v_add_u32 v{R.vV}, {KVR + 1024}, v3
    s_mov_b32 s35, 0x{f2u(MB_THRESH):08x}
    s_mov_b64 s[60:61], 0
    """)
    k.e("s_waitcnt vmcnt(10)")
    sig(k, vC, C_MISC)
    k.e(f"v_mul_f32 v{tt3}, 0x{f2u(QSCALE):08x}, v{st2+1}")
    for i in range(16): k.e(f"v_fma_f32 v{accQ+i}, v{st2}, v{accC+i}, v{accQ+i}")
    for i in range(16): k.e(f"v_mul_f32 v{accQ+i}, v{accQ+i}, v{tt3}")
    for qi in range(2):
        for i in range(4): k.e(f"v_cvt_pk_bf16_f32 v{R.Q[qi]+i}, v{accQ+8*qi+2*i}, v{accQ+8*qi+2*i+1}")
    if ctx.dbgq:
        for qi in range(2):
            k.e(f"s_add_u32 s56, s32, {WS_Q + qi*1024}")
            k.e(f"buffer_store_dwordx4 v[{R.Q[qi]}:{R.Q[qi]+3}], v2, s[4:7], s56 offen")
        k.e("s_waitcnt vmcnt(0)")
    for qi in range(NQ):
        c = accQ + 8 * qi
        k.e(f"v_mul_f32 v{QN[qi]}, v{c}, v{c}\nv_mul_f32 v{R.t[2+qi]}, v{c+1}, v{c+1}")
    for i in range(1, 4):
        for qi in range(NQ):
            c = accQ + 8 * qi
            k.e(f"v_fma_f32 v{QN[qi]}, v{c+2*i}, v{c+2*i}, v{QN[qi]}\nv_fma_f32 v{R.t[2+qi]}, v{c+2*i+1}, v{c+2*i+1}, v{R.t[2+qi]}")
    for qi in range(NQ): k.e(f"v_add_f32 v{QN[qi]}, v{QN[qi]}, v{R.t[2+qi]}")
    allreduce_add(k, QN, [tt0, tt1], ["p32"])
    KM = big + 4
    k.e(f"v_max3_f32 v{KM}, v{big}, v{big+1}, v{big+2}\nv_max_f32 v{KM}, v{KM}, v{big+3}")
    wave_allreduce_max(k, KM, KM + 1)
    for qi in range(NQ):
        a = R.t[qi]
        k.e(f"v_mul_f32 v{a}, v{QN[qi]}, v{KM}")
        k.e(f"v_sqrt_f32 v{a}, v{a}")
        k.e("s_nop 0")
        k.e(f"v_mul_f32 v{a}, 0x{f2u(1.0079):08x}, v{a}")
        k.e(f"v_cmp_nge_f32 vcc, s35, v{a}")
        k.e("s_nop 1")
        k.e("s_or_b64 s[60:61], s[60:61], vcc")
    for qi in range(NQ):
        for i in range(16): k.e(f"v_sub_f32 v{R.C[qi]+i}, 0, v{R.t[qi]}")
    fast = k.newlabel("fast")
    k.e("s_cmp_eq_u64 s[60:61], 0")
    k.e(f"s_cbranch_scc1 {fast}")
    m0_, m1_, tt = R.t[0], R.t[1], R.t[2]
    lp = k.newlabel("maxloop")
    k.e(f"v_mov_b32 v{m0_}, 0xff800000\nv_mov_b32 v{m1_}, 0xff800000")
    k.e(f"s_mov_b32 s56, {WS_KV}\ns_mov_b32 s57, 64")
    k.lab(lp)
    k.e(f"buffer_load_dwordx4 v[{R.K}:{R.K+3}], v{vKl}, s[4:7], s56 offen sc1")
    k.e(f"s_add_u32 s56, s56, {KVT}")
    k.e("s_waitcnt vmcnt(0)")
    for qi in range(2):
        k.e(f"v_mfma_f32_32x32x16_bf16 v[{R.S[qi]}:{R.S[qi]+15}], v[{R.K}:{R.K+3}], v[{R.Q[qi]}:{R.Q[qi]+3}], 0")
    k.e("s_nop 15\ns_nop 7")
    for qi, m in ((0, m0_), (1, m1_)):
        for i in range(8): k.e(f"v_max3_f32 v{m}, v{R.S[qi]+2*i}, v{R.S[qi]+2*i+1}, v{m}")
    k.e(f"s_sub_u32 s57, s57, 1\ns_cmp_lg_u32 s57, 0\ns_cbranch_scc1 {lp}")
    for qi, m in ((0, m0_), (1, m1_)):
        k.e(f"v_mov_b32 v{tt}, v{m}\ns_nop 1\nv_permlane32_swap_b32 v{m}, v{tt}\ns_nop 1\nv_max_f32 v{m}, v{m}, v{tt}")
        for i in range(16): k.e(f"v_sub_f32 v{R.C[qi]+i}, 0, v{m}")
    k.lab(fast)
    sk3 = k.newlabel("nof1b")
    k.e(f"s_cmp_lg_u32 s20, 3\ns_cbranch_scc1 {sk3}")
    poll(k, vC, C_MISC, 4, vT)
    k.e(f"""
    s_add_u32 s34, s23, 1
    v_mov_b32 v{vT}, s34
    v_lshlrev_b32 v3, 10, v1
    s_lshl_b32 s56, s26, 2
    s_add_u32 s56, s56, {WS_F1B}
    s_mov_b64 exec, 0xff
    buffer_store_dword v{vT}, v3, s[4:7], s56 offen sc1
    s_mov_b64 exec, -1
    """)
    k.lab(sk3)
    vKS = vKn
    k.e(f"v_min_u32 v{vKS}, 3, v1\nv_lshlrev_b32 v{vKS}, 2, v{vKS}\nv_add_u32 v{vKS}, {CNT + C_KS}, v{vKS}")
    poll4(k, vKS, 1, vT, sleep=1)
    mk('a_kv')
    k.e(f"ds_read_b128 v[{R.K}:{R.K+3}], v{R.vK}")
    k.e("s_waitcnt lgkmcnt(0)")
    k.e(f"v_mfma_f32_32x32x16_bf16 v[{R.S[0]}:{R.S[0]+15}], v[{R.K}:{R.K+3}], v[{R.Q[0]}:{R.Q[0]+3}], v[{R.C[0]}:{R.C[0]+15}]")
    k.e("s_nop 7\ns_nop 7")
    mk('a_go')
    if 'ap0' in exps: k.e("s_setprio 0")
    assert NSLOT == 2
    k.e(f"s_mov_b32 s62, 0\ns_mov_b32 s65, 2\ns_mov_b32 s63, 9")
    lp = k.newlabel("attnloop")
    k.e(".p2align 6")
    k.lab(lp)
    U = TPC
    for half in range(2):
        base = half * CHUNK; nbase = (1 - half) * CHUNK
        def prefetch_cnt(half=half):
            k.e(f"ds_read_b32 v{vT}, v{vC} offset:{C_KVC}")
        def nextchunk(half=half):
            sk = k.newlabel("last")
            if half == 0:
                sk0 = k.newlabel("nfirst")
                k.e(f"s_cmp_lg_u32 s62, 0\ns_cbranch_scc1 {sk0}")
                poll4(k, vKS, 2, vT, sleep=1)
                k.e(f"s_branch {sk}")
                k.lab(sk0)
            k.e(f"v_readfirstlane_b32 s66, v{vT}")
            k.e(f"s_add_u32 s65, s65, 1\ns_min_u32 s65, s65, {NCH}")
            k.e(f"s_cmp_ge_u32 s66, s65\ns_cbranch_scc1 {sk}")
            poll(k, vC, C_KVC, "s65", vT, 66, 67)
            k.lab(sk)
        def consumed():
            if 'cds' in exps:
                dsig(k, f"s33, {C_AP}", "s63")
                k.e("s_add_u32 s63, s63, 1")
            else: sig(k, vP, 0)
        for i in range(U):
            kread = f"ds_read_b128 v[{R.K}:{R.K+3}], v{R.vK} offset:{base + (i+1)*KVT}" if i < U - 1 else f"ds_read_b128 v[{R.K}:{R.K+3}], v{R.vK} offset:{nbase}"
            reads = [kread,
                     f"ds_read_b128 v[{R.V[i&1]}:{R.V[i&1]+3}], v{R.vV} offset:{base + i*KVT}",
                     f"ds_read_b128 v[{R.V[i&1]+4}:{R.V[i&1]+7}], v{R.vV} offset:{base + i*KVT+544}"]
            ar = None
            if i == U - 2: ar = prefetch_cnt
            ar2 = consumed if i == U - 1 else None
            if half == 0 and f'a_t{i}' in ctx.marks:
                sk2 = k.newlabel("att")
                k.e(f"s_cmp_lg_u32 s62, 1\ns_cbranch_scc1 {sk2}")
                mk(f'a_t{i}')
                k.lab(sk2)
            segment(k, R.S[0], R.P[0], (R.S[1], R.K, R.Q[1], R.C[1]), (R.O[1], R.V[(i + 1) & 1], R.P[1]), reads, None, after_reads=ar)
            segment(k, R.S[1], R.P[1], (R.S[0], R.K, R.Q[0], R.C[0]), (R.O[0], R.V[i & 1], R.P[0]), [], "s_waitcnt lgkmcnt(0)",
                    extra=nextchunk if i == U - 2 else None, after_reads=ar2)
    for c in range(NCH // 2):
        if f'a_it{c}' in ctx.marks:
            sk2 = k.newlabel("ast")
            k.e(f"s_cmp_lg_u32 s62, {c}\ns_cbranch_scc1 {sk2}")
            mk(f'a_it{c}')
            k.lab(sk2)
    k.e(f"s_add_u32 s62, s62, 1\ns_cmp_lt_u32 s62, {NCH // 2}\ns_cbranch_scc1 {lp}")
    O_, V_, Ps = R.O[1], R.V[1], R.P[1]
    k.e(f"v_mfma_f32_32x32x16_bf16 v[{O_}:{O_+15}], v[{V_}:{V_+3}], v[{Ps}:{Ps+3}], v[{O_}:{O_+15}]")
    k.e(f"v_mfma_f32_32x32x16_bf16 v[{O_}:{O_+15}], v[{V_+4}:{V_+7}], v[{Ps+4}:{Ps+7}], v[{O_}:{O_+15}]")
    mk('a_end')
    k.e("s_nop 15\ns_nop 7")
    for qi in range(NQ):
        O = R.O[qi]; r = R.t[qi]
        k.e(f"v_rcp_f32 v{r}, v{O+8}")
        k.e("s_nop 0")
        for i in range(8): k.e(f"v_mul_f32 v{O+i}, v{O+i}, v{r}")
        for i in range(4): k.e(f"v_cvt_pk_bf16_f32 v{O+i}, v{O+2*i}, v{O+2*i+1}")
        k.e(f"s_add_u32 s56, s32, {WS_O + qi*1024}")
        k.e(f"buffer_store_dwordx4 v[{O}:{O+3}], v2, s[4:7], s56 offen sc1")
    sig(k, vC, C_ADONE)
    k.e("s_waitcnt lgkmcnt(0)")
    mk('a_out')
    ctx.finish()

def g_role(ctx):
    k, mk, exps, D = ctx.k, ctx.mk, ctx.exps, ctx.D
    vC, vP, vT, vU, vW_ = 3, 4, 5, 6, 7
    acc1 = [8 + 16 * i for i in range(7)]
    Ar = [120 + 4 * i for i in range(7)]
    Bf = [148, 152]
    vA = [156 + i for i in range(7)]
    vB = [163 + i for i in range(4)]
    assert vB[3] < VG
    tt0, tt1, tt2, tt3, tt4, tt5, tt6, tt7 = range(104, 112)
    GP = 'nogprio' not in exps
    k.e(f"""
    s_sub_u32 s27, s20, 4
    v_mov_b32 v{vC}, {CNT}
    s_lshl_b32 s56, s27, 2
    s_add_u32 s56, s56, {CNT + C_GP}
    v_mov_b32 v{vP}, s56
    v_lshrrev_b32 v{tt0}, 4, v1
    v_and_b32 v{tt1}, 15, v1
    v_xor_b32 v{tt2}, v{tt0}, v{tt1}
    v_lshlrev_b32 v{tt2}, 4, v{tt2}
    v_lshlrev_b32 v{tt3}, 10, v{tt0}
    v_add_u32 v{tt6}, v{tt3}, v{tt2}
    v_add_u32 v{tt0}, 4, v{tt0}
    v_xor_b32 v{tt2}, v{tt0}, v{tt1}
    v_lshlrev_b32 v{tt2}, 4, v{tt2}
    v_add_u32 v{tt7}, v{tt3}, v{tt2}
    s_barrier
    """)
    if GP: k.e("s_setprio 1")
    ctx.after_kernarg()
    k.e(f"""
    s_lshr_b32 s58, s26, 2
    s_lshl_b32 s58, s58, 5
    s_and_b32 s59, s26, 2
    s_lshl_b32 s59, s59, 3
    s_add_u32 s58, s58, s59
    s_and_b32 s59, s26, 1
    s_lshl_b32 s59, s59, 2
    s_add_u32 s58, s58, s59
    s_lshl_b32 s58, s58, 10
    s_lshl_b32 s59, s27, 8
    s_add_u32 s58, s58, s59
    s_lshl_b32 s59, s27, 11
    s_add_u32 m0, s59, {X8}
    s_add_u32 s60, s58, 8192
    buffer_load_dwordx4 v{tt6}, s[8:11], s58 offen lds
    s_add_u32 m0, s59, {X8 + 1024}
    s_lshl_b32 s61, s27, 12
    buffer_load_dwordx4 v{tt7}, s[8:11], s60 offen lds
    """)
    gdma = Pace(k, vC, vT, 0 if 'nopace' in exps else (1 if 'pace1' in exps else 2))
    srd(k, 12, 40, 41, 16384)
    srd(k, 16, 42, 43, 16384)
    for mtx in range(2):
        for i in range(4):
            k.e(f"s_add_u32 m0, s61, {WKV + mtx*WVO + i*1024}")
            k.e(f"s_add_u32 s56, s61, {i*1024}")
            gdma(f"buffer_load_dwordx4 v2, s[{12+4*mtx}:{15+4*mtx}], s56 offen lds")
    sig(k, vC, C_GI)
    tab_init(k, tt0)
    k.e(f"""
    v_and_b32 v{tt0}, 31, v1
    v_lshrrev_b32 v{tt1}, 5, v1
    v_lshrrev_b32 v{tt2}, 1, v{tt0}
    v_and_b32 v{tt2}, 7, v{tt2}
    v_xor_b32 v{tt2}, v{tt2}, v{tt1}
    s_lshl_b32 s56, s27, 5
    v_add_u32 v{tt0}, s56, v{tt0}
    v_lshlrev_b32 v{tt0}, 7, v{tt0}
    v_add_u32 v{tt0}, {XRING}, v{tt0}
    """)
    for q in range(4):
        k.e(f"v_xor_b32 v{tt3}, {2*q}, v{tt2}\nv_lshlrev_b32 v{tt3}, 4, v{tt3}\nv_add_u32 v{vB[q]}, v{tt0}, v{tt3}")
    k.e(f"""
    v_lshrrev_b32 v{tt0}, 4, v1
    v_and_b32 v{tt1}, 1, v{tt0}
    v_lshrrev_b32 v{tt0}, 1, v{tt0}
    v_and_b32 v{tt2}, 15, v1
    v_lshrrev_b32 v{tt3}, 2, v{tt2}
    v_and_b32 v{tt2}, 3, v{tt2}
    v_lshlrev_b32 v{tt4}, 3, v{tt0}
    v_add_u32 v{tt4}, v{tt4}, v{tt3}
    """)
    vKVr = 44; vX8 = 45
    k.e(f"""
    v_lshlrev_b32 v{tt5}, 5, v{tt4}
    v_mul_u32_u24 v{tt6}, {WVO}, v{tt1}
    v_add_u32 v{tt5}, v{tt5}, v{tt6}
    v_lshlrev_b32 v{tt7}, 3, v{tt2}
    v_add_u32 v{tt5}, v{tt5}, v{tt7}
    s_lshl_b32 s56, s27, 12
    s_add_u32 s56, s56, {WKV}
    v_add_u32 v{vKVr}, s56, v{tt5}
    v_lshlrev_b32 v{tt4}, 8, v{tt4}
    v_lshlrev_b32 v{tt5}, 12, v{tt1}
    v_add_u32 v{tt4}, v{tt4}, v{tt5}
    v_add_u32 v{tt4}, v{tt4}, v{tt7}
    v_lshlrev_b32 v{tt3}, 1, v{tt3}
    v_add_u32 v{tt3}, v{tt3}, v{tt1}
    """)
    for ai in range(7):
        k.e(f"v_xor_b32 v{tt5}, {ai}, v{tt3}\nv_lshlrev_b32 v{tt5}, 5, v{tt5}\nv_add_u32 v{vA[ai]}, v{tt5}, v{tt4}")
    xa = [32 + 0 for _ in range(0)]
    k.e(f"""
    v_and_b32 v{tt4}, 7, v1
    v_xor_b32 v{tt5}, v{tt0}, v{tt4}
    v_lshlrev_b32 v{tt4}, 8, v{tt4}
    s_lshl_b32 s56, s27, 11
    s_add_u32 s56, s56, {X8}
    v_add_u32 v{tt4}, s56, v{tt4}
    """)
    xad = [146 + i for i in range(8)]
    for ks in range(8):
        k.e(f"v_xor_b32 v{tt6}, {2*ks}, v{tt5}\nv_lshlrev_b32 v{tt6}, 4, v{tt6}\nv_add_u32 v{xad[ks]}, v{tt4}, v{tt6}")
    accK, accS = 48, 80
    ones = 96
    xf = [8 + 4 * i for i in range(8)]; wf = [112 + 4 * i for i in range(8)]
    for i in range(4): k.e(f"v_mov_b32 v{ones+i}, 0x3f803f80")
    pK, pV, pS = 100, 101, 102
    k.e(f"""
    v_and_b32 v{tt0}, 7, v1
    v_lshrrev_b32 v{tt1}, 5, v1
    v_lshlrev_b32 v{tt2}, 3, v{tt1}
    v_add_u32 v{tt2}, v{tt2}, v{tt0}
    v_lshlrev_b32 v{pK}, 5, v{tt2}
    v_lshlrev_b32 v{pV}, 7, v{tt1}
    v_lshlrev_b32 v{tt2}, 2, v{tt0}
    v_add_u32 v{pV}, v{pV}, v{tt2}
    v_lshlrev_b32 v{pS}, 3, v{tt0}
    v_add_u32 v{pS}, {ST8}, v{pS}
    s_mul_i32 s56, s27, {KVPS}
    s_add_u32 s56, s56, {KVP}
    v_add_u32 v{pK}, s56, v{pK}
    v_add_u32 v{pV}, s56, v{pV}
    s_waitcnt vmcnt(0) lgkmcnt(0)
    """)
    mk('g_w')
    lq = LQ(k)
    for i in range(8):
        lq.op(f"ds_read_b64_tr_b16 v[{wf[i]}:{wf[i]+1}], v{vKVr} offset:{i*512}", ("w", i))
        lq.op(f"ds_read_b64_tr_b16 v[{wf[i]+2}:{wf[i]+3}], v{vKVr} offset:{i*512+128}", ("w", i))
        lq.op(f"ds_read_b128 v[{xf[i]}:{xf[i]+3}], v{xad[i]}", ("x", i))
    for i in range(8):
        lq.wait(("w", i), ("x", i))
        cK = "0" if i == 0 else f"v[{accK}:{accK+15}]"
        cS = "0" if i == 0 else f"v[{accS}:{accS+15}]"
        k.e(f"v_mfma_f32_32x32x16_bf16 v[{accK}:{accK+15}], v[{wf[i]}:{wf[i]+3}], v[{xf[i]}:{xf[i]+3}], {cK}")
        k.e(f"v_mfma_f32_32x32x16_bf16 v[{accS}:{accS+15}], v[{ones}:{ones+3}], v[{wf[i]}:{wf[i]+3}], {cS}")
    mk('g_m')
    k.e(f"""
    v_lshlrev_b32 v{pS}, 2, v1
    s_mul_i32 s56, s27, {KVPS}
    s_add_u32 s56, s56, {KVP}
    v_add_u32 v{pS}, s56, v{pS}
    s_mov_b32 s58, 0xff
    s_mov_b32 s59, 0xff
    s_nop 7
    s_mov_b64 exec, s[58:59]
    ds_write_b128 v{pK}, v[{accK}:{accK+3}]
    ds_write_b128 v{pK}, v[{accK+4}:{accK+7}] offset:16
    """)
    for i in range(8):
        k.e(f"ds_write_b32 v{pV}, v{accK+8+i} offset:{512 + (i&3)*32 + (i>>2)*256}")
    k.e(f"""
    s_mov_b32 s58, -1
    s_mov_b32 s59, 0
    s_mov_b64 exec, s[58:59]
    ds_write_b32 v{pS}, v{accS} offset:1024
    s_mov_b64 exec, -1
    """)
    sig(k, vC, C_KVM)
    mk('g_kvm')
    lK = k.newlabel("finK"); lV = k.newlabel("finV"); lE = k.newlabel("finE")
    k.e(f"s_cmp_eq_u32 s27, 0\ns_cbranch_scc1 {lK}\ns_cmp_eq_u32 s27, 1\ns_cbranch_scc1 {lV}\ns_branch {lE}")
    big = 48
    tt0, tt1, tt2, tt3, tt4, tt5 = 8, 9, 10, 11, 12, 13
    def kt_setup():
        k.e("s_lshr_b32 s30, s26, 2\ns_and_b32 s32, s26, 3")
        k.e(f"s_mul_i32 s31, s30, {KVT}\ns_add_u32 s31, s31, {WS_KV}")
    def flag1(which):
        mk('g_st')
        k.e(f"""
        s_waitcnt vmcnt(0)
        s_add_u32 s56, s23, 1
        v_mov_b32 v{tt0}, s56
        v_lshlrev_b32 v{tt1}, 11, v1
        s_lshl_b32 s56, s26, 3
        s_add_u32 s56, s56, {WS_F1 + 4*which}
        s_mov_b64 exec, 0xff
        buffer_store_dword v{tt0}, v{tt1}, s[4:7], s56 offen sc1
        s_mov_b64 exec, -1
        """)
        sig(k, vC, C_F1)
    def read_stats(vaddr, base):
        for p in range(4): k.e(f"ds_read_b64 v[{base+2*p}:{base+2*p+1}], v{vaddr} offset:{1024 + p*KVPS}")
    def sum_stats(base, a_, r_):
        k.e(f"v_add_f32 v{base}, v{base}, v{base+2}\nv_add_f32 v{base+1}, v{base+1}, v{base+3}")
        k.e(f"v_add_f32 v{base+4}, v{base+4}, v{base+6}\nv_add_f32 v{base+5}, v{base+5}, v{base+7}")
        k.e(f"v_add_f32 v{base}, v{base}, v{base+4}\nv_add_f32 v{base+1}, v{base+1}, v{base+5}")
        stats_math(k, base, base + 1, a_, r_)
    k.lab(lK)
    if 'ap0' in exps: k.e("s_setprio 3")
    kt_setup()
    k.e(f"""
    v_and_b32 v{tt0}, 7, v1
    v_lshrrev_b32 v{tt1}, 5, v1
    v_lshlrev_b32 v{tt2}, 3, v{tt1}
    v_add_u32 v{tt2}, v{tt2}, v{tt0}
    s_and_b32 s56, s32, 1
    s_lshl_b32 s56, s56, 3
    v_add_u32 v{tt3}, s56, v{tt2}
    v_and_b32 v{tt3}, 15, v{tt3}
    v_lshlrev_b32 v{tt3}, 4, v{tt3}
    s_lshl_b32 s56, s32, 8
    v_add_u32 v{tt3}, s56, v{tt3}
    v_lshlrev_b32 v{tt2}, 5, v{tt2}
    v_add_u32 v{tt2}, {KVP}, v{tt2}
    v_lshlrev_b32 v{tt5}, 4, v{tt1}
    v_add_u32 v{tt5}, {KVP}, v{tt5}
    v_lshlrev_b32 v{tt4}, 3, v{tt0}
    v_add_u32 v{tt4}, {ST8}, v{tt4}
    """)
    poll(k, vC, C_ST, 4, vT)
    k.e(f"ds_read_b64 v[24:25], v{tt4}")
    poll(k, vC, C_KVM, 4, vT)
    mk('g_p')
    csb = 80
    for p in range(4):
        k.e(f"ds_read_b128 v[{big+8*p}:{big+8*p+3}], v{tt2} offset:{p*KVPS}")
        k.e(f"ds_read_b128 v[{big+8*p+4}:{big+8*p+7}], v{tt2} offset:{p*KVPS + 16}")
    for p in range(4):
        k.e(f"ds_read_b128 v[{csb+8*p}:{csb+8*p+3}], v{tt5} offset:{1024 + p*KVPS}")
        k.e(f"ds_read_b128 v[{csb+8*p+4}:{csb+8*p+7}], v{tt5} offset:{1024 + p*KVPS + 32}")
    sig(k, vC, C_FIN)
    k.e("s_waitcnt lgkmcnt(9)")
    for i in range(8):
        k.e(f"v_add_f32 v{big+i}, v{big+i}, v{big+8+i}")
        k.e(f"v_add_f32 v{big+16+i}, v{big+16+i}, v{big+24+i}")
    for i in range(8): k.e(f"v_add_f32 v{big+i}, v{big+i}, v{big+16+i}")
    k.e("s_waitcnt lgkmcnt(0)")
    for i in range(8):
        k.e(f"v_add_f32 v{csb+i}, v{csb+i}, v{csb+8+i}")
        k.e(f"v_add_f32 v{csb+16+i}, v{csb+16+i}, v{csb+24+i}")
    for i in range(8): k.e(f"v_add_f32 v{csb+i}, v{csb+i}, v{csb+16+i}")
    for i in range(8): k.e(f"v_fma_f32 v{big+i}, v24, v{csb+i}, v{big+i}")
    for i in range(8): k.e(f"v_mul_f32 v{big+i}, v{big+i}, v25")
    for i in range(4): k.e(f"v_cvt_pk_bf16_f32 v{big+8+i}, v{big+2*i}, v{big+2*i+1}")
    k.e(f"""
    s_mov_b32 s58, 0xff
    s_mov_b32 s59, 0xff
    s_mov_b64 exec, s[58:59]
    buffer_store_dwordx4 v[{big+8}:{big+11}], v{tt3}, s[4:7], s31 offen sc1
    s_mov_b64 exec, -1
    v_mul_f32 v{tt0}, v{big}, v{big}
    v_mul_f32 v{tt4}, v{big+1}, v{big+1}
    """)
    for i in range(1, 4):
        k.e(f"v_fma_f32 v{tt0}, v{big+2*i}, v{big+2*i}, v{tt0}")
        k.e(f"v_fma_f32 v{tt4}, v{big+2*i+1}, v{big+2*i+1}, v{tt4}")
    k.e(f"v_add_f32 v{tt0}, v{tt0}, v{tt4}")
    k.e(f"v_mov_b32 v{tt4}, v{tt0}\ns_nop 1\nv_permlane32_swap_b32 v{tt0}, v{tt4}\ns_nop 1\nv_add_f32 v{tt0}, v{tt0}, v{tt4}")
    for ctl in ("quad_perm:[1,0,3,2]", "quad_perm:[2,3,0,1]", "row_half_mirror"):
        k.e(f"s_nop 1\nv_max_f32_dpp v{tt0}, v{tt0}, v{tt0} {ctl} row_mask:0xf bank_mask:0xf")
    k.e(f"""
    v_mul_f32 v{tt0}, 0x{f2u(1.0079):08x}, v{tt0}
    s_lshl_b32 s56, s26, 2
    s_add_u32 s56, s56, {WS_KMAX}
    v_mov_b32 v{tt4}, 0
    s_mov_b64 exec, 1
    buffer_store_dword v{tt0}, v{tt4}, s[4:7], s56 offen sc1
    s_mov_b64 exec, -1
    """)
    k.e(f"v_mov_b32 v{tt4}, s23\ns_mov_b64 exec, 1\nds_write_b32 v{vC}, v{tt4} offset:{C_EP}\ns_mov_b64 exec, -1")
    poll(k, vC, C_STACK, 4, vT)
    flag1(0)
    k.e(f"s_branch {lE}")
    k.lab(lV)
    if 'ap0' in exps: k.e("s_setprio 3")
    kt_setup()
    k.e(f"""
    v_and_b32 v{tt0}, 15, v1
    v_lshlrev_b32 v{tt2}, 5, v{tt0}
    v_add_u32 v{tt2}, {KVP}, v{tt2}
    v_lshlrev_b32 v{tt5}, 2, v{tt0}
    v_add_u32 v{tt5}, {KVP}, v{tt5}
    v_lshlrev_b32 v{tt3}, 4, v1
    v_mov_b32 v{tt4}, {ST8}
    s_lshr_b32 s56, s32, 1
    s_mul_i32 s56, s56, 544
    s_and_b32 s57, s32, 1
    s_mul_i32 s57, s57, 272
    s_add_u32 s56, s56, s57
    s_add_u32 s56, s56, s31
    s_add_u32 s33, s56, 1024
    """)
    poll(k, vC, C_ST, 4, vT)
    st16 = 16
    for q in range(4): k.e(f"ds_read_b128 v[{st16+4*q}:{st16+4*q+3}], v{tt4} offset:{16*q}")
    poll(k, vC, C_KVM, 4, vT)
    csb = 80
    for p in range(4):
        k.e(f"ds_read_b128 v[{big+8*p}:{big+8*p+3}], v{tt2} offset:{512 + p*KVPS}")
        k.e(f"ds_read_b128 v[{big+8*p+4}:{big+8*p+7}], v{tt2} offset:{528 + p*KVPS}")
    for p in range(4): k.e(f"ds_read_b32 v{csb+p}, v{tt5} offset:{1024 + 64 + p*KVPS}")
    sig(k, vC, C_FIN)
    k.e("s_waitcnt lgkmcnt(5)")
    for i in range(8):
        k.e(f"v_add_f32 v{big+i}, v{big+i}, v{big+8+i}")
        k.e(f"v_add_f32 v{big+16+i}, v{big+16+i}, v{big+24+i}")
    for i in range(8): k.e(f"v_add_f32 v{big+i}, v{big+i}, v{big+16+i}")
    k.e("s_waitcnt lgkmcnt(0)")
    k.e(f"v_add_f32 v{csb}, v{csb}, v{csb+1}\nv_add_f32 v{csb+2}, v{csb+2}, v{csb+3}\nv_add_f32 v{csb}, v{csb}, v{csb+2}")
    for i in range(8): k.e(f"v_fma_f32 v{big+i}, v{st16+2*i}, v{csb}, v{big+i}")
    for i in range(8): k.e(f"v_mul_f32 v{big+i}, v{big+i}, v{st16+2*i+1}")
    for i in range(4): k.e(f"v_cvt_pk_bf16_f32 v{big+8+i}, v{big+2*i}, v{big+2*i+1}")
    k.e(f"v_cmp_eq_u32 vcc, 16, v1\nv_mov_b32 v{tt0}, 0x3f803f80")
    for i in range(4): k.e(f"v_cndmask_b32 v{big+8+i}, v{big+8+i}, v{tt0}, vcc")
    k.e(f"""
    s_mov_b64 exec, 0x1ffff
    buffer_store_dwordx4 v[{big+8}:{big+11}], v{tt3}, s[4:7], s33 offen sc1
    s_mov_b64 exec, -1
    """)
    flag1(1)
    k.e(f"s_branch {lE}")
    k.lab(lE)
    mk('g_fin')
    if 'gquit' in exps:
        k.e("s_waitcnt vmcnt(0)")
        sig(k, vC, C_MISC)
        ctx.finish()
    if GP: k.e("s_setprio 0")
    k.e("s_mov_b32 s29, 0\ns_mov_b32 s72, 0\ns_mov_b32 s73, 0\ns_mov_b32 s74, 0\ns_mov_b32 s75, 0")
    STALL = 'g_stall' in ctx.marks
    if STALL: k.e("s_mov_b32 s82, 0\ns_mov_b32 s83, 0")
    def ensure1(sreg, vaddr, off, m):
        sk = k.newlabel("rdy")
        k.e(f"s_cmp_ge_u32 s{sreg}, {m}\ns_cbranch_scc1 {sk}")
        if STALL: k.e("s_memtime s[78:79]")
        poll(k, vaddr, off, m, vT, sreg, 57)
        if STALL: k.e("s_memtime s[80:81]\ns_waitcnt lgkmcnt(0)\ns_sub_u32 s80, s80, s78\ns_add_u32 s82, s82, s80\ns_add_u32 s83, s83, 1")
        k.lab(sk)
    def ensure(n):
        st, q = divmod(n, 4)
        if q == 0: ensure1(29, vP, C_RX - C_GP, st + 1)
        ensure1(72 + q, vC, C_RW + 4 * q, st + 1)
    lq = LQ(k)
    def rdA(n, i):
        off = (n % 8) * 8192
        lq.op(f"ds_read_b64_tr_b16 v[{Ar[i]}:{Ar[i]+1}], v{vA[i]} offset:{off}", ("A", n, i))
        lq.op(f"ds_read_b64_tr_b16 v[{Ar[i]+2}:{Ar[i]+3}], v{vA[i]} offset:{off+1024}", ("A", n, i))
    def rdB(n):
        st, q = divmod(n, 4)
        lq.op(f"ds_read_b128 v[{Bf[n&1]}:{Bf[n&1]+3}], v{vB[q]} offset:{XSLOT(st) - XRING}", ("B", n))
    k.e(f"s_lshl_b32 s33, s27, 2\ns_add_u32 s33, s33, {CNT + C_GP}")
    def progress(n):
        if 'cds' in exps: dsig(k, "s33, 0", n)
        elif 'p2' in exps:
            if n % 2 == 0:
                k.e("s_mov_b64 exec, 4"); lq.op(f"ds_add_u32 v{vP}, v1"); k.e("s_mov_b64 exec, -1")
        else:
            k.e("s_mov_b64 exec, 2"); lq.op(f"ds_add_u32 v{vP}, v1"); k.e("s_mov_b64 exec, -1")
    def pre_cnt(n):
        st, q = divmod(n, 4)
        lq.op(f"ds_read_b32 v{vU}, v{vC} offset:{C_RW + 4*q}", ("cw", n))
        if q == 0: lq.op(f"ds_read_b32 v{vW_}, v{vP} offset:{C_RX - C_GP}", ("cx", n))
    def use_cnt(n):
        st, q = divmod(n, 4)
        lq.wait(("cw", n), ("cx", n))
        k.e(f"v_readfirstlane_b32 s{72+q}, v{vU}")
        if q == 0: k.e(f"v_readfirstlane_b32 s29, v{vW_}")
    ensure(0)
    mk('g_f1s')
    rdB(0)
    for i in range(7): rdA(0, i)
    pre_cnt(1)
    for n in range(32):
        if n + 1 < 32:
            use_cnt(n + 1)
            ensure(n + 1)
        for i in range(7):
            if i == 0: lq.wait(("A", n, 0), ("B", n))
            else: lq.wait(("A", n, i))
            c = acc1[i]
            cin = "0" if n == 0 else f"v[{c}:{c+15}]"
            k.e(f"v_mfma_f32_32x32x16_bf16 v[{c}:{c+15}], v[{Ar[i]}:{Ar[i]+3}], v[{Bf[n&1]}:{Bf[n&1]+3}], {cin}")
            if n + 1 < 32:
                rdA(n + 1, i)
                if i == 0: rdB(n + 1)
            if i == 6: progress(n + 1)
            if i == 3 and n + 2 < 32: pre_cnt(n + 2)
        if f'g_k{n}' in ctx.marks: mk(f'g_k{n}')
        if f'g_s{n}' in ctx.marks: k.e(f"s_add_u32 s{84+2*ctx.marks[f'g_s{n}']}, s84, s82")
    mk('g_f1e')
    if STALL:
        i1 = ctx.marks['g_stall']; i2 = ctx.marks.get("g_npoll", i1)
        k.e(f"s_add_u32 s{84+2*i2}, s84, s83\ns_add_u32 s{84+2*i1}, s84, s82")
    if GP: k.e("s_setprio 1")
    poll(k, vC, C_KS + 4, 1, vT)
    poll(k, vC, C_XA, 1, vT)
    st2 = Bf[0]; XB = Bf[1]
    k.e(f"""
    v_and_b32 v{vU}, 31, v1
    s_lshl_b32 s56, s27, 5
    v_add_u32 v{vU}, s56, v{vU}
    v_lshlrev_b32 v{vU}, 3, v{vU}
    v_add_u32 v{vU}, {STATS}, v{vU}
    ds_read_b64 v[{st2}:{st2+1}], v{vU}
    v_lshlrev_b32 v{vU}, 2, v1
    v_add_u32 v{vU}, {XAL}, v{vU}
    """)
    for i in range(7):
        k.e(f"ds_read_b32 v{Ar[i]}, v{vU} offset:{i*256}")
        for j in range(1, 4): k.e(f"v_mov_b32 v{Ar[i]+j}, 0")
    for j in range(1, 4): k.e(f"v_mov_b32 v{XB+j}, 0")
    k.e(f"""
    s_lshl_b32 s56, s21, 2
    s_add_u32 s56, s56, s27
    s_mul_i32 s56, s56, 112
    s_mul_i32 s57, s22, 7
    s_add_u32 s56, s56, s57
    s_lshl_b32 s56, s56, 10
    s_add_u32 s33, s56, {WS_H}
    s_add_u32 s34, s33, 4096
    s_waitcnt lgkmcnt(0)
    v_lshrrev_b32 v{vU}, 16, v{st2}
    v_or_b32 v{XB}, v{vU}, v{st2}
    v_mul_f32 v{vW_}, v{st2+1}, v{st2+1}
    s_nop 1
    """)
    for i in range(7):
        c = acc1[i]
        k.e(f"v_mfma_f32_32x32x16_bf16 v[{c}:{c+15}], v[{Ar[i]}:{Ar[i]+3}], v[{XB}:{XB+3}], v[{c}:{c+15}]")
    k.e("s_nop 7")
    for i in range(7):
        c = acc1[i]
        for j in range(8):
            k.e(f"v_max_f32 v{c+j}, 0, v{c+j}")
            k.e(f"v_mul_f32 v{c+8+j}, v{c+8+j}, v{vW_}")
        for j in range(8): k.e(f"v_mul_f32 v{c+j}, v{c+j}, v{c+8+j}")
        for j in range(4): k.e(f"v_cvt_pk_bf16_f32 v{c+j}, v{c+2*j}, v{c+2*j+1}")
        k.e(f"buffer_store_dwordx4 v[{c}:{c+3}], v2, s[4:7], s{33 if i < 4 else 34} offen offset:{(i%4)*1024} sc1")
    mk('g_ep')
    acc = [[8, 24], [40, 56]]
    ring = [72 + 16 * i for i in range(D)]
    assert D == 4
    k.e(f"""
    s_mul_i32 s30, s27, {28*16}
    s_lshl_b32 s56, s25, 1
    s_add_u32 s30, s30, s56
    s_lshl_b32 s30, s30, 10
    s_add_u32 s30, s30, {WS_WD}
    s_lshl_b32 s56, s24, 1
    s_mul_i32 s28, s56, 112
    s_mul_i32 s57, s27, 28
    s_add_u32 s28, s28, s57
    s_lshl_b32 s28, s28, 10
    s_add_u32 s28, s28, {WS_H}
    s_add_u32 s29, s28, {112*1024}
    s_waitcnt vmcnt(0)
    s_add_u32 s34, s23, 2
    v_mov_b32 v{vT}, s34
    v_lshlrev_b32 v{vU}, 13, v1
    s_and_b32 s57, s2, 1
    s_lshl_b32 s57, s57, 12
    s_lshl_b32 s56, s26, 2
    s_add_u32 s56, s56, s27
    s_lshl_b32 s56, s56, 2
    s_add_u32 s56, s56, s57
    s_add_u32 s56, s56, {WS_F2}
    s_mov_b64 exec, 15
    buffer_store_dword v{vT}, v{vU}, s[4:7], s56 offen sc1
    s_mov_b64 exec, -1
    """)
    sig(k, vC, C_F2)
    mk('g_h')
    poll(k, vC, C_F2, 5, vT, sleep=2)
    mk('g_f2')
    if GP: k.e("s_setprio 0")
    def loads(i):
        r = ring[i % D]
        k.e(f"buffer_load_dwordx4 v[{r}:{r+3}], v2, s[4:7], s30 offen sc1")
        k.e(f"buffer_load_dwordx4 v[{r+4}:{r+7}], v2, s[4:7], s30 offen offset:1024 sc1")
        k.e(f"buffer_load_dwordx4 v[{r+8}:{r+11}], v2, s[4:7], s28 offen offset:{(i%4)*1024} sc1")
        k.e(f"buffer_load_dwordx4 v[{r+12}:{r+15}], v2, s[4:7], s29 offen offset:{(i%4)*1024} sc1")
        k.e(f"s_add_u32 s30, s30, 16384")
        if i % 4 == 3: k.e("s_add_u32 s28, s28, 4096\ns_add_u32 s29, s29, 4096")
    def mf(A0, A1, B0, B1, first=False):
        for (a, t_, A, B) in ((0, 0, A0, B0), (1, 0, A1, B0), (0, 1, A0, B1), (1, 1, A1, B1)):
            c = acc[a][t_]
            cin = "0" if first else f"v[{c}:{c+15}]"
            k.e(f"v_mfma_f32_32x32x16_bf16 v[{c}:{c+15}], v[{A}:{A+3}], v[{B}:{B+3}], {cin}")
    for i in range(D): loads(i)
    for i in range(28):
        n = 4 * min(D - 1, 27 - i)
        k.e(f"s_waitcnt vmcnt({n})")
        r = ring[i % D]
        mf(r, r + 4, r + 8, r + 12, first=(i == 0))
        if i + D < 28: loads(i + D)
    mk('g_ffn')
    if GP: k.e("s_setprio 1")
    tile = {0: acc[0][0], 1: acc[1][0], 2: acc[0][1], 3: acc[1][1]}
    OWN = 72
    xq = 88
    vx = 136; vo = 137
    k.e(f"""
    s_and_b32 s58, s27, 1
    s_lshr_b32 s59, s27, 1
    v_and_b32 v{vU}, 31, v1
    v_lshlrev_b32 v{vU}, 10, v{vU}
    v_lshrrev_b32 v{vT}, 5, v1
    v_lshlrev_b32 v{vx}, 3, v{vT}
    v_add_u32 v{vx}, v{vx}, v{vU}
    v_lshlrev_b32 v{vo}, 4, v{vT}
    v_add_u32 v{vo}, v{vo}, v{vU}
    s_lshl_b32 s56, s24, 16
    s_lshl_b32 s57, s59, 15
    s_add_u32 s56, s56, s57
    s_lshl_b32 s57, s25, 7
    s_add_u32 s56, s56, s57
    s_lshl_b32 s57, s58, 6
    s_add_u32 s31, s56, s57
    """)
    for q in range(4):
        k.e(f"buffer_load_dwordx2 v[{xq+2*q}:{xq+2*q+1}], v{vx}, s[8:11], s31 offen offset:{16*q}")
    k.e("s_nop 7\ns_nop 7")
    for j in range(4):
        sk = k.newlabel("redw"); se = k.newlabel("redwe")
        k.e(f"s_cmp_eq_u32 s27, {j}\ns_cbranch_scc1 {sk}")
        k.e(f"s_sub_u32 s56, s27, {j+1}\ns_and_b32 s56, s56, 3\ns_lshl_b32 s56, s56, 12\ns_add_u32 s56, s56, {RED + j*3*4096}")
        k.e(f"v_add_u32 v{vT}, s56, v2")
        for q in range(4): k.e(f"ds_write_b128 v{vT}, v[{tile[j]+4*q}:{tile[j]+4*q+3}] offset:{q*1024}")
        k.e(f"s_branch {se}")
        k.lab(sk)
        for i in range(16): k.e(f"v_mov_b32 v{OWN+i}, v{tile[j]+i}")
        k.lab(se)
    sig(k, vC, C_RED)
    WA = [8 + 4 * i for i in range(16)]
    OB = [96 + 4 * i for i in range(10)] + [140 + 4 * i for i in range(6)]
    k.e(f"""
    s_lshl_b32 s56, s25, 1
    s_add_u32 s56, s56, s58
    s_add_u32 s56, s56, {112*16}
    s_lshl_b32 s56, s56, 10
    s_add_u32 s30, s56, {WS_WD}
    s_lshl_b32 s56, s24, 1
    s_add_u32 s56, s56, s59
    s_lshl_b32 s56, s56, 15
    s_add_u32 s28, s56, {WS_O}
    s_waitcnt lgkmcnt(0)
    """)
    s_wa = 30; s_ob = 28
    def load_wa(i, head):
        k.e(f"s_add_u32 s56, s{s_wa}, {head*16384}")
        k.e(f"buffer_load_dwordx4 v[{WA[i]}:{WA[i]+3}], v2, s[4:7], s56 offen sc1")
    def load_ob(i, head):
        k.e(f"s_add_u32 s56, s{s_ob}, {head*1024}")
        k.e(f"buffer_load_dwordx4 v[{OB[i]}:{OB[i]+3}], v2, s[4:7], s56 offen sc1")
    for i in range(16): load_wa(i, i)
    poll(k, vC, C_RED, 4, vT)
    rr = 96
    k.e(f"s_mul_i32 s56, s27, {3*4096}\ns_add_u32 s56, s56, {RED}")
    k.e(f"v_add_u32 v{vT}, s56, v2")
    for p in range(2):
        for q in range(4): k.e(f"ds_read_b128 v[{rr+16*p+4*q}:{rr+16*p+4*q+3}], v{vT} offset:{p*4096+q*1024}")
    k.e("s_waitcnt lgkmcnt(0)")
    for i in range(16): k.e(f"v_add_f32 v{rr+i}, v{rr+i}, v{rr+16+i}")
    for q in range(4): k.e(f"ds_read_b128 v[{rr+16+4*q}:{rr+16+4*q+3}], v{vT} offset:{2*4096+q*1024}")
    for i in range(16): k.e(f"v_add_f32 v{OWN+i}, v{OWN+i}, v{rr+i}")
    k.e("s_waitcnt lgkmcnt(0)")
    for i in range(16): k.e(f"v_add_f32 v{OWN+i}, v{OWN+i}, v{rr+16+i}")
    k.e("s_waitcnt vmcnt(16)")
    for q in range(4):
        for j in range(2):
            k.e(f"v_lshlrev_b32 v{vT}, 16, v{xq+2*q+j}")
            k.e(f"v_add_f32 v{OWN+4*q+2*j}, v{OWN+4*q+2*j}, v{vT}")
            k.e(f"v_and_b32 v{vT}, 0xffff0000, v{xq+2*q+j}")
            k.e(f"v_add_f32 v{OWN+4*q+2*j+1}, v{OWN+4*q+2*j+1}, v{vT}")
    mk('g_red')
    srd(k, 12, 54, 55, 2048 * 1024)
    poll(k, vC, C_ADONE, 4, vT, sleep=2)
    mk('g_ad')
    lp = k.newlabel("opoll"); ok = k.newlabel("ook")
    k.e("s_mov_b32 s62, 100000")
    k.lab(lp)
    for i in range(16): load_ob(i, i)
    for i in range(16):
        k.e(f"s_waitcnt vmcnt({15-i})")
        o = OB[i]
        if i == 0:
            k.e(f"v_max3_u32 v{vT}, v{o}, v{o+1}, v{o+2}")
            k.e(f"v_max_u32 v{vT}, v{o+3}, v{vT}")
        else:
            k.e(f"v_max3_u32 v{vT}, v{o}, v{o+1}, v{vT}")
            k.e(f"v_max3_u32 v{vT}, v{o+2}, v{o+3}, v{vT}")
    k.e(f"v_cmp_eq_u32 vcc, -1, v{vT}")
    k.e("s_sub_u32 s62, s62, 1")
    k.e("s_cmp_eq_u64 vcc, 0")
    k.e(f"s_cbranch_scc1 {ok}")
    k.e(f"s_cmp_lg_u32 s62, 0\ns_cbranch_scc1 {lp}")
    k.lab(ok)
    mk('g_o')
    for i in range(16):
        k.e(f"v_mfma_f32_32x32x16_bf16 v[{OWN}:{OWN+15}], v[{WA[i]}:{WA[i]+3}], v[{OB[i]}:{OB[i]+3}], v[{OWN}:{OWN+15}]")
        load_wa(i, 16 + i); load_ob(i, 16 + i)
    retries = []
    for i in range(16):
        lr = k.newlabel("retry"); lb = k.newlabel("back")
        k.e(f"s_waitcnt vmcnt({2*(15-i)})")
        k.lab(lb)
        o = OB[i]
        k.e(f"v_max3_u32 v{vT}, v{o}, v{o+1}, v{o+2}")
        k.e(f"v_max_u32 v{vT}, v{o+3}, v{vT}")
        k.e(f"v_cmp_eq_u32 vcc, -1, v{vT}")
        k.e("s_nop 0")
        k.e("s_cmp_lg_u64 vcc, 0")
        k.e(f"s_cbranch_scc1 {lr}")
        lc = k.newlabel("cont")
        k.lab(lc)
        k.e(f"v_mfma_f32_32x32x16_bf16 v[{OWN}:{OWN+15}], v[{WA[i]}:{WA[i]+3}], v[{OB[i]}:{OB[i]+3}], v[{OWN}:{OWN+15}]")
        retries.append((lr, lb, lc, i))
    k.e("s_nop 15\ns_nop 1")
    P = 96
    for i in range(8): k.e(f"v_cvt_pk_bf16_f32 v{P+i}, v{OWN+2*i}, v{OWN+2*i+1}")
    k.e("s_nop 1")
    for q2 in range(2):
        k.e(f"v_permlane32_swap_b32 v{P+4*q2}, v{P+4*q2+2}")
        k.e(f"v_permlane32_swap_b32 v{P+4*q2+1}, v{P+4*q2+3}")
    k.e("s_nop 1")
    for q2 in range(2):
        k.e(f"buffer_store_dwordx4 v[{P+4*q2}:{P+4*q2+3}], v{vo}, s[12:15], s31 offen offset:{32*q2}")
    mk('g_end')
    ctx.finish()
    for (lr, lb, lc, i) in retries:
        k.lab(lr)
        k.e(f"s_sub_u32 s62, s62, 1\ns_cmp_eq_u32 s62, 0\ns_cbranch_scc1 {lc}")
        load_ob(i, 16 + i)
        k.e("s_waitcnt vmcnt(0)")
        k.e(f"s_branch {lb}")

def p_role(ctx):
    k, mk, exps = ctx.k, ctx.mk, ctx.exps
    vC, vT, vPP = 3, 4, 5
    tt0, tt1, tt2, tt3, tt4 = range(8, 13)
    big = 32
    dma = Pace(k, vC, vT, 0 if 'nopace' in exps else (1 if 'pace1' in exps else 2))
    k.e(f"s_sub_u32 s27, s20, 8")
    k.e(f"v_mov_b32 v{vC}, {CNT}")
    k.e("s_setprio 3" if 'noprio' not in exps else "s_nop 0")
    sk = k.newlabel("nz")
    k.e(f"s_cmp_lg_u32 s27, 0\ns_cbranch_scc1 {sk}")
    k.e(f"v_lshlrev_b32 v{tt0}, 2, v1\nv_add_u32 v{tt0}, {CNT}, v{tt0}\nv_mov_b32 v{tt1}, 0\nds_write_b32 v{tt0}, v{tt1}\ns_waitcnt lgkmcnt(0)")
    k.lab(sk)
    k.e("s_barrier")
    vX = [6, 7]; vQw = 24; vWg = 25; vQc = 27; vR = 28; vAP = 29
    k.e(f"""
    v_lshrrev_b32 v{tt0}, 3, v1
    v_lshlrev_b32 v{tt0}, 10, v{tt0}
    v_lshrrev_b32 v{tt1}, 4, v1
    v_and_b32 v{tt2}, 7, v1
    v_xor_b32 v{tt3}, v{tt1}, v{tt2}
    v_lshlrev_b32 v{tt3}, 4, v{tt3}
    v_add_u32 v{vX[0]}, v{tt0}, v{tt3}
    v_add_u32 v{tt4}, 4, v{tt1}
    v_xor_b32 v{tt3}, v{tt4}, v{tt2}
    v_lshlrev_b32 v{tt3}, 4, v{tt3}
    v_add_u32 v{vX[1]}, v{tt0}, v{tt3}
    v_and_b32 v{tt1}, 1, v{tt1}
    v_lshlrev_b32 v{tt1}, 2, v{tt1}
    v_xor_b32 v{tt3}, v{tt1}, v{tt2}
    v_lshlrev_b32 v{tt3}, 4, v{tt3}
    v_add_u32 v{vQw}, v{tt0}, v{tt3}
    s_lshl_b32 s56, s27, 2
    s_add_u32 s57, s56, {CNT + C_Q}
    v_mov_b32 v{vQc}, s57
    s_add_u32 s57, s56, {CNT + C_RW}
    v_mov_b32 v{vR}, s57
    v_min_u32 v{vPP}, 3, v1
    v_lshlrev_b32 v{vPP}, 2, v{vPP}
    v_add_u32 v{vAP}, {CNT + C_AP}, v{vPP}
    v_add_u32 v{vPP}, {CNT + C_GP}, v{vPP}
    """)
    ctx.after_kernarg(epoch=False)
    tab_init(k, tt0)
    k.e(f"s_lshl_b32 s39, s27, 2\ns_add_u32 s39, s39, {CNT}") if False else None
    srd(k, 16, 38, 39, 512 * 1024)
    k.e(f"s_lshl_b32 s39, s27, 2\ns_add_u32 s39, s39, {CNT}")
    if 'norot' in exps: k.e("s_mov_b32 s28, 0")
    elif 'rotx' in exps: k.e("s_and_b32 s28, s2, 7")
    else: k.e("s_and_b32 s56, s22, 3\ns_lshl_b32 s56, s56, 1\ns_add_u32 s28, s21, s56\ns_and_b32 s28, s28, 7")
    k.e("s_lshl_b32 s29, s24, 16\ns_lshl_b32 s30, s25, 7")
    def qpart(b):
        k.e(f"s_add_u32 s59, s28, {b}\ns_and_b32 s59, s59, 7")
        k.e(f"s_lshl_b32 s60, s59, 7\ns_add_u32 s60, s60, s29")
        k.e(f"s_lshl_b32 s61, s59, 16\ns_add_u32 s61, s61, s30")
        for j in range(2):
            k.e(f"s_add_u32 m0, s63, {QBASE[b] + j*1024}")
            k.e(f"s_add_u32 s56, s60, {j*8192}")
            dma(f"buffer_load_dwordx4 v{vX[j]}, s[8:11], s56 offen lds")
        for j in range(2):
            k.e(f"s_add_u32 m0, s63, {QBASE[b] + 8192 + j*1024}")
            k.e(f"s_add_u32 s56, s61, {j*8192}")
            dma(f"buffer_load_dwordx4 v{vQw}, s[16:19], s56 offen lds")
    k.e("s_lshl_b32 s63, s27, 11\ns_lshl_b32 s56, s27, 14\ns_add_u32 s29, s29, s56\ns_add_u32 s30, s30, s56")
    if 'nogi' not in exps: poll(k, vC, C_GI, 8, vT)
    for b in range(8):
        if b == 6: poll(k, vC, C_KVM, 4, vT)
        qpart(b)
        if b == 0:
            mk('p_a')
            k.e("s_waitcnt vmcnt(4)")
        dsig(k, f"s39, {C_Q}", b + 1)
    mk('p_b')
    srd(k, 12, 48, 49, 512 * 3584)
    srd(k, 16, 50, 51, 512 * 3584)
    for isU in range(2):
        k.e(f"""
        v_lshrrev_b32 v{tt0}, 4, v1
        v_and_b32 v{tt1}, 15, v1
        v_lshrrev_b32 v{tt2}, 1, v{tt1}
        v_and_b32 v{tt1}, 1, v{tt1}
        v_lshlrev_b32 v{tt3}, 1, v{tt0}
        v_add_u32 v{tt3}, {isU}, v{tt3}
        v_xor_b32 v{tt2}, v{tt2}, v{tt3}
        v_mul_u32_u24 v{tt3}, 3584, v{tt0}
        v_lshlrev_b32 v{tt4}, 5, v{tt2}
        v_add_u32 v{tt3}, v{tt3}, v{tt4}
        v_lshlrev_b32 v{tt4}, 4, v{tt1}
        v_add_u32 v{tt3}, v{tt3}, v{tt4}
        s_mul_i32 s58, s22, 224
        v_add_u32 v{tt3}, s58, v{tt3}
        v_mov_b32 v{tt4}, 0x7ff00000
        v_cmp_eq_u32 vcc, 7, v{tt2}
        v_cndmask_b32 v{vWg+isU}, v{tt3}, v{tt4}, vcc
        """)
    k.e("s_lshl_b32 s29, s21, 17\ns_lshl_b32 s56, s27, 15\ns_add_u32 s29, s29, s56")
    def fsetup(st):
        k.e(f"""
        s_add_u32 s59, s28, {st}
        s_and_b32 s59, s59, 7
        s_lshl_b32 s60, s59, 7
        s_add_u32 s60, s60, s29
        s_lshl_b32 s61, s59, 2
        s_add_u32 s61, s61, s27
        s_mul_i32 s61, s61, {16*3584}
        s_lshl_b32 s62, s27, 13
        s_lshl_b32 s63, s27, 12
        """)
    def fW(st):
        if 'nodma' in exps: return
        for isU in range(2):
            for m in range(4):
                k.e(f"s_add_u32 m0, s62, {WRING + (st&1)*32768 + isU*4096 + m*1024}")
                k.e(f"s_add_u32 s56, s61, {4*m*3584}")
                dma(f"buffer_load_dwordx4 v{vWg+isU}, s[{12+4*isU}:{15+4*isU}], s56 offen lds")
    def fX(st):
        if 'nodma' in exps: return
        for j in range(4):
            k.e(f"s_add_u32 m0, s63, {XSLOT(st) + j*1024}")
            k.e(f"s_add_u32 s56, s60, {j*8192}")
            dma(f"buffer_load_dwordx4 v{vX[j&1]}, s[8:11], s56 offen lds")
    def kvchunk():
        k.e(f"s_add_u32 s56, s33, s30\ns_and_b32 s56, s56, {NCH-1}\ns_mul_i32 s57, s56, {CHUNK}\ns_add_u32 s57, s57, {WS_KV}")
        for m in range(17):
            k.e(f"s_add_u32 m0, s34, {m*1024}")
            k.e(f"s_add_u32 s60, s57, {m*1024}")
            if m == 16: k.e("s_mov_b32 s58, -1\ns_mov_b32 s59, 0\ns_mov_b64 exec, s[58:59]")
            dma(f"buffer_load_dwordx4 v2, s[4:7], s60 offen sc1 lds")
            if m == 16: k.e("s_mov_b64 exec, -1")
        k.e("s_add_u32 s65, s30, 1")
        dsig(k, CNT + C_KVC, "s65")
        k.e(f"s_add_u32 s34, s34, {CHUNK}\ns_cmp_eq_u32 s34, {KVR + NSLOT*CHUNK}\ns_cselect_b32 s34, {KVR}, s34\ns_add_u32 s30, s30, 1")
    k.e(f"s_mov_b32 s30, 2\ns_mov_b32 s34, {KVR}\ns_lshr_b32 s33, s2, 3\ns_mov_b32 s38, 0")
    def xa_loads():
        k.e(f"s_and_b32 s35, s2, 7\ns_lshl_b32 s35, s35, 10\ns_add_u32 s35, s35, {WS_F1B}")
        k.e(f"buffer_load_dwordx4 v[{big+28}:{big+31}], v2, s[4:7], s35 offen sc1")
        k.e(f"""
        v_and_b32 v{tt0}, 15, v1
        v_and_b32 v{tt1}, 16, v1
        v_mul_u32_u24 v{tt1}, 112, v{tt1}
        v_add_u32 v{tt0}, v{tt0}, v{tt1}
        v_lshlrev_b32 v{tt0}, 4, v{tt0}
        s_mul_i32 s56, s22, 112
        s_lshl_b32 s56, s56, 4
        s_add_u32 s56, s56, {WS_CS}
        s_add_u32 s57, s56, 1024
        """)
        for ai in range(7):
            k.e(f"buffer_load_dwordx4 v[{big+4*ai}:{big+4*ai+3}], v{tt0}, s[4:7], s{56 if ai < 4 else 57} offen offset:{(ai%4)*256} sc1")
    def drain(): pass
    def gate(vaddr, target):
        poll4(k, vaddr, target, vT, sleep=1)
    def kv_try():
        lx = k.newlabel("nokv")
        k.e(f"s_cmp_lg_u32 s27, 1\ns_cbranch_scc1 {lx}\ns_cmp_ge_u32 s30, {NCH}\ns_cbranch_scc1 {lx}")
        k.e(f"ds_read_b32 v{vT}, v{vAP}\ns_add_u32 s65, s30, {8 - NSLOT + 1}\ns_waitcnt lgkmcnt(0)")
        k.e(f"v_cmp_gt_u32 vcc, s65, v{vT}\ns_nop 0\ns_cmp_lg_u64 vcc, 0\ns_cbranch_scc1 {lx}")
        drain()
        kvchunk()
        k.lab(lx)
    def xsetup(st):
        k.e(f"s_add_u32 s59, s28, {st}\ns_and_b32 s59, s59, 7\ns_lshl_b32 s60, s59, 7\ns_add_u32 s60, s60, s29\ns_lshl_b32 s63, s27, 12")
    for st in range(8):
        if 'gquit' in exps: break
        if st == 0: gate(vAP, 2)
        elif st == 1: gate(vAP, 4)
        else:
            k.e(f"s_add_u32 s65, s27, {4*st - 7}")
            gate(vPP, "s65")
        fsetup(st)
        fW(st)
        dsig(k, f"s39, {C_RW}", st + 1)
        if st == 0:
            poll(k, vC, C_FIN, 2, vT)
            xsetup(0); fX(0)
            dsig(k, f"s39, {C_RX}", 1)
            mk('p_c')
        if st + 1 < 8:
            if st == 0: gate(vAP, 7)
            elif st == 1: gate(vAP, 8)
            else: gate(vPP, 4*st - 4)
            xsetup(st + 1); fX(st + 1)
            dsig(k, f"s39, {C_RX}", st + 2)
        if st == 6:
            lx = k.newlabel("noxa")
            k.e(f"s_cmp_lg_u32 s27, 3\ns_cbranch_scc1 {lx}")
            xa_loads()
            k.lab(lx)
        if st == 7:
            lx = k.newlabel("noxb")
            k.e(f"s_cmp_lg_u32 s27, 3\ns_cbranch_scc1 {lx}")
            k.e("s_waitcnt vmcnt(9)")
            lr = k.newlabel("xaretry"); lo = k.newlabel("xaok")
            k.e(f"ds_read_b32 v{tt2}, v{vC} offset:{C_EP}\ns_waitcnt lgkmcnt(0)\nv_readfirstlane_b32 s36, v{tt2}\ns_add_u32 s36, s36, 1\ns_mov_b32 s37, 100000")
            k.lab(lr)
            for i in range(4): k.e(f"v_xor_b32 v{big+28+i}, s36, v{big+28+i}")
            k.e(f"v_or3_b32 v{big+28}, v{big+28}, v{big+29}, v{big+30}\nv_or_b32 v{big+28}, v{big+28}, v{big+31}")
            k.e(f"v_cmp_ne_u32 vcc, 0, v{big+28}")
            k.e("s_sub_u32 s37, s37, 1")
            k.e("s_cmp_eq_u64 vcc, 0")
            k.e(f"s_cbranch_scc1 {lo}")
            k.e(f"s_cmp_eq_u32 s37, 0\ns_cbranch_scc1 {lo}")
            k.e("s_sleep 8")
            xa_loads()
            k.e("s_waitcnt vmcnt(0)")
            k.e(f"s_branch {lr}")
            k.lab(lo)
            k.e(f"v_cmp_gt_u32 vcc, 32, v1")
            k.e(f"v_lshlrev_b32 v{tt1}, 2, v1\nv_add_u32 v{tt1}, {XAL}, v{tt1}")
            for ai in range(7):
                c = big + 4 * ai
                k.e(f"v_add_f32 v{c}, v{c}, v{c+1}\nv_add_f32 v{c+2}, v{c+2}, v{c+3}\nv_add_f32 v{c}, v{c}, v{c+2}")
                k.e(f"v_cndmask_b32 v{c}, 0, v{c}, vcc")
                k.e(f"v_cvt_pk_bf16_f32 v{tt2}, v{c}, v{c}")
                k.e(f"v_lshlrev_b32 v{tt2}, 16, v{tt2}")
                k.e(f"v_sub_f32 v{tt2}, v{c}, v{tt2}")
                k.e(f"v_cvt_pk_bf16_f32 v{c}, v{c}, v{tt2}")
                k.e(f"ds_write_b32 v{tt1}, v{c} offset:{ai*256}")
            sig(k, vC, C_XA)
            k.lab(lx)
        if st >= 2: kv_try()
    drain()
    mk('p_d')
    lP0 = k.newlabel("P0"); lP1 = k.newlabel("P1")
    k.e(f"s_cmp_eq_u32 s27, 0\ns_cbranch_scc1 {lP0}\ns_cmp_eq_u32 s27, 1\ns_cbranch_scc1 {lP1}")
    ctx.finish()
    k.lab(lP0)
    if 'gquit' in exps: ctx.finish()
    k.e(f"ds_read_b32 v{tt2}, v{vC} offset:{C_EP}\ns_waitcnt lgkmcnt(0)\nv_readfirstlane_b32 s23, v{tt2}")
    poll(k, vC, C_F2, 4, vT, sleep=4)
    mk('p_e')
    k.e(f"""
    s_add_u32 s34, s23, 2
    s_and_b32 s35, s2, 7
    s_lshl_b32 s35, s35, 12
    s_lshl_b32 s56, s21, 8
    s_add_u32 s35, s35, s56
    s_add_u32 s35, s35, {WS_F2}
    v_lshlrev_b32 v{tt0}, 2, v1
    """)
    gpoll(k, big, 1, 35, 34, 4, vaddr=tt0, dw=1)
    sig(k, vC, C_F2)
    mk('p_f')
    ctx.finish()
    k.lab(lP1)
    lp = k.newlabel("kvloop"); le = k.newlabel("kvend")
    k.lab(lp)
    k.e(f"s_cmp_ge_u32 s30, {NCH}\ns_cbranch_scc1 {le}")
    k.e(f"s_add_u32 s65, s30, {8 - NSLOT + 1}")
    poll4(k, vAP, "s65", vT, sleep=4)
    kvchunk()
    k.e(f"s_branch {lp}")
    k.lab(le)
    mk('p_e')
    ctx.finish()

if __name__ == "__main__":
    import argparse
    ap = argparse.ArgumentParser()
    ap.add_argument("out"); ap.add_argument("--stamps", action="store_true"); ap.add_argument("--rt", action="store_true")
    ap.add_argument("--dbgq", action="store_true"); ap.add_argument("--D", type=int, default=4); ap.add_argument("--exp", default="")
    ap.add_argument("--wg", type=int, default=5); ap.add_argument("--marks", default=DEF_MARKS)
    a = ap.parse_args()
    kt, la = v7_kernel(stamps=a.stamps, rt=a.rt, dbgq=a.dbgq, D=a.D, exp=a.exp, stamp_wg=a.wg, marks=a.marks)
    open(a.out, "w").write(assemble_file([la], [kt]))
```
